```python
import torch

def _softmax(x, axis=-1):
    return torch.softmax(x, dim=axis)
def _gelu(x):
    return torch.nn.functional.gelu(x, approximate="tanh")
def _silu(x):
    return torch.nn.functional.silu(x)
def _sigmoid(x):
    return torch.sigmoid(x)
def _layernorm(x, axis=-1, eps=1e-5):
    m = x.mean(dim=axis, keepdim=True)
    v = x.var(dim=axis, keepdim=True, unbiased=False)
    return (x - m) / torch.sqrt(v + eps)
def _scatter_add(tgt, idx, src, axis=0):
    return tgt.clone().index_add_(axis, idx, src)
def _segment_sum(src, seg, n):
    out = torch.zeros((n,) + src.shape[1:], dtype=src.dtype)
    return out.index_add_(0, seg, src)
def _pad(x, pw):
    flat = tuple(v for pair in reversed(pw) for v in pair)
    return torch.nn.functional.pad(x, flat)

kernel_name = 'standalone__cross_network_dcn__recsys'

def setup_inputs():

    _w = (lambda a: (lambda t: t.to(torch.bfloat16) if t.is_floating_point() else t)(torch.as_tensor(a)))
    B, F, D, L = 16384, 26, 16, 6
    Din = min(F * D, 1024)
    return {
        "x0": _w((lambda *s: torch.randn(*s, dtype=torch.bfloat16) * 0.05)(B, Din)),
        "ws": _w((lambda *s: torch.randn(*s, dtype=torch.bfloat16) * 0.8)(L, Din, Din) * (Din ** -0.5)),
        "bs": _w((lambda *s: torch.randn(*s, dtype=torch.bfloat16) * 3.2)(L, Din) * 0.01),
    }

def reference(x0, ws, bs):
    x = x0
    L = ws.shape[0]
    for l in range(L):
        proj = torch.einsum('bd,de->be', x, ws[l]) + bs[l]
        x = x0 * proj + x
    return x
```

```python
import sys
NAME="standalone__cross_network_dcn__recsys"
D=416; L=6; ROWB=832; XS=848
CH=26624; NSLOT=4; RING=CH*NSLOT; XB=RING; LDS=RING+64*XS
WB=L*D*D*2
TILEB=64*ROWB

class G:
    def __init__(s): s.L=[]; s.lq=[]
    def e(s,t): s.L.append("    "+t)
    def lab(s,t): s.L.append(t+":")
    def lds(s,t,dst=()):
        s.e(t); s.lq.append(set(dst))
    def need(s,regs):
        regs=set(regs); idx=-1
        for i,d in enumerate(s.lq):
            if d&regs: idx=i
        if idx>=0:
            n=len(s.lq)-1-idx
            s.e(f"s_waitcnt lgkmcnt({min(n,15)})")
            s.lq=s.lq[idx+1:]
    def drain(s):
        s.lq=[]

def ar(b,n): return [f"a{b+i}" for i in range(n)]
ACC=48; X0=152
def acc(j,bt): return ACC+16*(2*j+bt)
def accr(t): return ACC+96+4*t
def x0r(reg): return reg-ACC+X0
PA=[0,4,8]; PB=[12,16]; QA=[20,24,28]; QB=[32,36]; RA=40; RB=[44,48]
RAW=14
TMP=40
g=G()
e=g.e
e("s_cmp_ge_u32 s2, 256")
e("s_cbranch_scc1 L_done")
e("s_load_dwordx4 s[4:7], s[0:1], 0")
e("s_load_dwordx4 s[32:35], s[0:1], 16")
e("v_lshrrev_b32 v16, 6, v0")
e("v_and_b32 v14, 63, v0")
e("v_readfirstlane_b32 s24, v16")
e("s_mul_i32 s29, s2, %d"%TILEB)
e("s_waitcnt lgkmcnt(0)")
e("s_mov_b32 s8, s6"); e("s_and_b32 s9, s7, 0xffff"); e(f"s_mov_b32 s10, {WB}"); e("s_mov_b32 s11, 0x20000")
e("s_add_u32 s12, s4, s29"); e("s_addc_u32 s13, s5, 0"); e("s_and_b32 s13, s13, 0xffff"); e(f"s_mov_b32 s14, {TILEB}"); e("s_mov_b32 s15, 0x20000")
e("s_add_u32 s16, s34, s29"); e("s_addc_u32 s17, s35, 0"); e("s_and_b32 s17, s17, 0xffff"); e(f"s_mov_b32 s18, {TILEB}"); e("s_mov_b32 s19, 0x20000")
e("s_mov_b32 s20, s32"); e("s_and_b32 s21, s33, 0xffff"); e(f"s_mov_b32 s22, {L*ROWB}"); e("s_mov_b32 s23, 0x20000")
e("s_mov_b32 s30, -1"); e("s_mov_b32 s31, 0")
e("s_mov_b32 s36, -1"); e("s_mov_b32 s37, 0xfffff")
e("s_mul_i32 s27, s24, 6656")
e("v_lshlrev_b32 v13, 4, v14")
e(f"s_mul_i32 s38, s24, {16*ROWB}")
e(f"s_mul_i32 s39, s24, {16*XS}")
e(f"s_add_u32 s39, s39, {XB}")
e("s_mov_b64 exec, s[36:37]")
for r in range(16):
    e("s_mov_b32 m0, s39")
    e(f"s_add_u32 s39, s39, {XS}")
    e("buffer_load_dwordx4 v13, s[12:15], s38 offen lds")
    e(f"s_add_u32 s38, s38, {ROWB}")
e("s_mov_b64 exec, -1")
e("v_add_u32 v1, s27, v13")
e("v_add_u32 v2, 0x1000, v1")
e("s_mov_b32 s25, 0")
def dma(slot_sreg, lst):
    lst.append(f"s_add_u32 m0, {slot_sreg}, s27")
    lst.append("s_nop 0")
    for i in range(4): lst.append(f"buffer_load_dwordx4 v1, s[8:11], s25 offen offset:{1024*i} lds")
    lst.append("s_add_u32 m0, m0, 0x1000")
    lst.append("s_nop 0")
    for i in range(2): lst.append(f"buffer_load_dwordx4 v2, s[8:11], s25 offen offset:{1024*i} lds")
    lst.append("s_mov_b64 exec, s[30:31]\n    buffer_load_dwordx4 v2, s[8:11], s25 offen offset:2048 lds\n    s_mov_b64 exec, -1")
    lst.append(f"s_add_u32 s25, s25, {CH}")
for c in range(4):
    e(f"s_mov_b32 s26, {c*CH}")
    l=[]; dma("s26",l)
    for t in l: e(t)
e("s_mov_b32 s26, 0")
e("v_lshrrev_b32 v16, 4, v14")
e("v_bfe_u32 v17, v14, 2, 2")
e("v_and_b32 v18, 3, v14")
e("v_lshrrev_b32 v19, 5, v14")
e("v_lshl_add_u32 v20, v19, 3, v17")
e(f"v_mul_u32_u24 v20, {ROWB}, v20")
e("v_and_b32 v21, 1, v16")
e("v_lshl_add_u32 v20, v21, 5, v20")
e("v_lshl_add_u32 v20, v18, 3, v20")
e("s_mul_i32 s29, s24, 192")
e("v_add_u32 v3, s29, v20")
e("v_lshl_add_u32 v20, v16, 3, v17")
e(f"v_mul_u32_u24 v20, {ROWB}, v20")
e("v_lshl_add_u32 v20, v18, 3, v20")
e("s_and_b32 s40, s24, 1")
e("s_lshl_b32 s41, s40, 5")
e("s_add_u32 s41, s41, 768")
e("v_add_u32 v4, s41, v20")
e("v_mov_b32 v5, v3"); e("v_mov_b32 v6, v4")
e("v_and_b32 v20, 31, v14")
e(f"v_mul_u32_u24 v21, {XS}, v20")
e(f"v_add_u32 v21, {XB}, v21")
e("v_lshl_add_u32 v7, v19, 4, v21")
e("v_lshl_add_u32 v9, v19, 3, v21")
e("v_add_u32 v9, s29, v9")
e("s_lshr_b32 s42, s24, 1")
e("s_lshl_b32 s42, s42, 5")
e("v_and_b32 v20, 15, v14")
e("v_add_u32 v20, s42, v20")
e(f"v_mul_u32_u24 v21, {XS}, v20")
e(f"v_add_u32 v21, {XB}, v21")
e("v_lshl_add_u32 v8, v16, 4, v21")
e("v_lshl_add_u32 v10, v16, 3, v21")
e("v_add_u32 v10, s41, v10")
e("v_lshlrev_b32 v11, 3, v19")
e("v_add_u32 v11, s29, v11")
e("v_lshlrev_b32 v12, 3, v16")
e("v_add_u32 v12, s41, v12")
e("s_mov_b32 s28, 0")
e("s_mov_b32 s43, 0")
for r in range(104): e(f"v_mov_b32 v{ACC+r}, 1.0")
e("s_waitcnt vmcnt(21)")
e("s_barrier")
tiles=[(acc(j,bt), 9, bt*32*XS+j*64) for j in range(3) for bt in range(2)]
for (a,vb,off) in tiles:
    for q in range(4):
        g.lds(f"ds_read_b64 v[{x0r(a)+4*q+2}:{x0r(a)+4*q+3}], v{vb} offset:{off+16*q}",[f"v{x0r(a)+4*q+2}"])
for t in range(2):
    g.lds(f"ds_read_b64 v[{x0r(accr(t))+2}:{x0r(accr(t))+3}], v10 offset:{t*16*XS}",[f"v{x0r(accr(t))+2}"])
quads=[x0r(a)+4*q for (a,vb,off) in tiles for q in range(4)]+[x0r(accr(t)) for t in range(2)]
for qd in quads:
    g.need([f"v{qd+2}"])
    e(f"v_lshlrev_b32 v{qd}, 16, v{qd+2}")
    e(f"v_and_b32 v{qd+1}, 0xffff0000, v{qd+2}")
    e(f"v_lshlrev_b32 v{qd+2}, 16, v{qd+3}")
    e(f"v_and_b32 v{qd+3}, 0xffff0000, v{qd+3}")
def rdA(dst,j,s,lst):
    lst.append(("lds",f"ds_read_b64_tr_b16 a[{dst}:{dst+1}], v5 offset:{13312*s+64*j}",ar(dst,2)))
    lst.append(("lds",f"ds_read_b64_tr_b16 a[{dst+2}:{dst+3}], v5 offset:{13312*s+64*j+3328}",ar(dst+2,2)))
def rdB(dst,bt,c,s,lst):
    lst.append(("lds",f"ds_read_b128 a[{dst}:{dst+3}], v7 offset:{bt*32*XS+64*c+32*s}",ar(dst,4)))
def rdRA(lst):
    lst.append(("lds",f"ds_read_b64_tr_b16 a[{RA}:{RA+1}], v6",ar(RA,2)))
    lst.append(("lds",f"ds_read_b64_tr_b16 a[{RA+2}:{RA+3}], v6 offset:3328",ar(RA+2,2)))
def rdRB(t,c,lst):
    lst.append(("lds",f"ds_read_b128 a[{RB[t]}:{RB[t]+3}], v8 offset:{t*16*XS+64*c}",ar(RB[t],4)))
def put(f):
    if isinstance(f,tuple):
        if f[0]=="lds": g.lds(f[1],f[2])
    else: e(f)
l=[]
for j in range(3): rdA(PA[j],j,0,l)
for f in l: put(f)
e("s_waitcnt lgkmcnt(0)"); g.drain()
g.L.append(".p2align 6")
g.lab("L_layer")
l=[]
rdB(PB[0],0,0,0,l); rdB(PB[1],1,0,0,l)
for f in l: put(f)

def mfma(j,bt,A,B):
    a=acc(j,bt)
    g.need(ar(A[j],4)+ar(B[bt],4))
    e(f"v_mfma_f32_32x32x16_bf16 v[{a}:{a+15}], a[{A[j]}:{A[j]+3}], a[{B[bt]}:{B[bt]+3}], v[{a}:{a+15}]")
def mfmar(t):
    a=accr(t)
    g.need(ar(RA,4)+ar(RB[t],4))
    e(f"v_mfma_f32_16x16x32_bf16 v[{a}:{a+3}], a[{RA}:{RA+3}], a[{RB[t]}:{RB[t]+3}], v[{a}:{a+3}]")

def bias_add(reg, raw, half):
    t=TMP
    if half: u=f"v_and_b32 v{t}, 0xffff0000, v{raw}"
    else: u=f"v_lshlrev_b32 v{t}, 16, v{raw}"
    return [u, f"v_add_f32 v{reg}, v{t}, v{reg}"]

def run_phase(ms, fill, per_gap, special=None):
    fi=0
    for p,m in enumerate(ms):
        m()
        if special:
            for t in special(p): e(t)
        cap=per_gap[p]
        while cap>0 and fi<len(fill):
            put(fill[fi]); fi+=1; cap-=1
    while fi<len(fill):
        put(fill[fi]); fi+=1

def epi_tile(a,vb,off,nq,tog):
    out=[]
    for q in range(nq):
        t=40+4*((tog+q)&1)
        out.append(f"v_pk_mul_f32 v[{t}:{t+1}], v[{a+4*q}:{a+4*q+1}], v[{x0r(a)+4*q}:{x0r(a)+4*q+1}]")
        out.append(f"v_pk_mul_f32 v[{t+2}:{t+3}], v[{a+4*q+2}:{a+4*q+3}], v[{x0r(a)+4*q+2}:{x0r(a)+4*q+3}]")
        out.append(f"v_cvt_pk_bf16_f32 v{t}, v{t}, v{t+1}")
        out.append(f"v_cvt_pk_bf16_f32 v{t+1}, v{t+2}, v{t+3}")
        out.append(("lds",f"ds_write_b64 v{vb}, v[{t}:{t+1}] offset:{off+16*q}",[]))
    return out

for c in range(13):
    e(f"; ---- chunk {c} phase 1")
    fill=[]
    rdA(QA[0],0,1,fill); rdB(QB[0],0,c,1,fill); rdB(QB[1],1,c,1,fill); rdA(QA[1],1,1,fill); rdA(QA[2],2,1,fill)
    rdRA(fill); rdRB(0,c,fill); rdRB(1,c,fill)
    if c==0:
        for j in range(3):
            for q in range(4):
                fill.append(f"buffer_load_dwordx2 v[{RAW+2*(4*j+q)}:{RAW+2*(4*j+q)+1}], v11, s[20:23], s43 offen offset:{64*j+16*q}")
        fill.append(f"buffer_load_dwordx2 v[{RAW+24}:{RAW+25}], v12, s[20:23], s43 offen")
    def mk_special(c,s):
        def sp(p):
            out=[]
            if 4<=c<=11 and p<6:
                n=(c-4)*2+s
                tt=(p-3)%6; j=tt>>1; bt=tt&1
                q=n>>2; i=n&3
                out+=bias_add(acc(j,bt)+n, RAW+2*(4*j+q)+(i>>1), i&1)
                if s==0 and p==3:
                    t=(c-4)>>2; r=(c-4)&3
                    out+=bias_add(accr(t)+r, RAW+24+(r>>1), r&1)
            return out
        return sp
    ms=[(lambda j=j,bt=bt: mfma(j,bt,PA,PB)) for j in range(3) for bt in range(2)]
    run_phase(ms,fill,[3,3,3,3,5,5],mk_special(c,0))
    nv = 27 if c<3 else 14
    e(f"s_waitcnt vmcnt({nv}) lgkmcnt(0)"); g.drain()
    e("s_barrier")
    fill=[]
    dl=[]; dma("s26",dl)
    fill.append(dl[0])
    fill.append(f"s_add_u32 s26, s26, {CH}")
    fill.append(f"s_cmp_eq_u32 s26, {RING}")
    fill.append("s_cselect_b32 s26, 0, s26")
    fill.append("v_add_u32 v5, s26, v3")
    fill.append("v_add_u32 v6, s26, v4")
    rdA(PA[0],0,0,fill)
    if c<12:
        rdB(PB[0],0,c+1,0,fill); rdB(PB[1],1,c+1,0,fill)
    rdA(PA[1],1,0,fill); rdA(PA[2],2,0,fill)
    fill+=dl[2:6]+[dl[6]]+dl[8:]
    idx=fill.index(dl[6]); fill.insert(idx+1,"s_nop 0")
    ms=[(lambda j=j,bt=bt: mfma(j,bt,QA,QB)) for j in range(3) for bt in range(2)]+[(lambda t=t: mfmar(t)) for t in range(2)]
    if c<12:
        run_phase(ms,fill,[4,4,4,4,4,4,2,2],mk_special(c,1))
    else:
        run_phase(ms,fill,[5,5,5,5,5,5,2,2],mk_special(c,1))
        tog=0
        for (a,vb,off) in tiles:
            for f in epi_tile(a,vb,off,4,tog): put(f)
        e("s_nop 7")
        for t in range(2):
            for f in epi_tile(accr(t),10,t*16*XS,1,t): put(f)
e("s_add_u32 s28, s28, 1")
e(f"s_add_u32 s43, s43, {ROWB}")
e("s_waitcnt lgkmcnt(0)"); g.drain()
e("s_barrier")
e(f"s_cmp_lt_u32 s28, {L}")
e("s_cbranch_scc1 L_layer")
e(f"s_mul_i32 s38, s24, {16*ROWB}")
e(f"s_mul_i32 s39, s24, {16*XS}")
e(f"s_add_u32 s39, s39, {XB}")
e("v_add_u32 v16, s39, v13")
e("s_mov_b64 exec, s[36:37]")
for r in range(16):
    e(f"ds_read_b128 v[{48+4*r}:{48+4*r+3}], v16 offset:{r*XS}")
for r in range(16):
    e(f"s_waitcnt lgkmcnt({15-r})")
    e(f"buffer_store_dwordx4 v[{48+4*r}:{48+4*r+3}], v13, s[16:19], s38 offen")
    e(f"s_add_u32 s38, s38, {ROWB}")
g.lab("L_done")

hdr=open("cdna_kernels/"+NAME+".s.ref").read().split("; Override launch")[0]
out=hdr+f"; @launch grid=(256,1,1) block=(256,1,1) lds={LDS}\n"
out+=f""".amdgcn_target "amdgcn-amd-amdhsa--gfx950"
.text
.globl {NAME}_kernel
.p2align 8
.type {NAME}_kernel,@function
{NAME}_kernel:
"""+"\n".join(g.L)+f"""
s_endpgm
.section .rodata,"a"
.p2align 6
.amdhsa_kernel {NAME}_kernel
  .amdhsa_next_free_vgpr 308
  .amdhsa_next_free_sgpr 64
  .amdhsa_accum_offset 256
  .amdhsa_group_segment_fixed_size 0
  .amdhsa_kernarg_size 48
  .amdhsa_user_sgpr_count 2
  .amdhsa_user_sgpr_kernarg_segment_ptr 1
  .amdhsa_system_sgpr_workgroup_id_x 1
.end_amdhsa_kernel
"""
open(sys.argv[1] if len(sys.argv)>1 else "cdna_kernels/"+NAME+".s","w").write(out)
```

```python
import sys,os
STAMP=int(os.environ.get("STAMP","0"))
NODMA=int(os.environ.get("NODMA","0"))
NORD=int(os.environ.get("NORD","0"))
PRIO=int(os.environ.get("PRIO","0"))
NOMFMA=int(os.environ.get("NOMFMA","0"))
NOBAR=int(os.environ.get("NOBAR","0"))
NOPART=int(os.environ.get("NOPART","0"))
NOEPI=int(os.environ.get("NOEPI","0"))
NAME="standalone__cross_network_dcn__recsys"
D=416; L=6; ROWB=832; XS=864
CH=26624; NSLOT=4; RING=CH*NSLOT; XB=RING; LDS=RING+64*XS
WB=L*D*D*2
TILEB=64*ROWB

class G:
    def __init__(s): s.L=[]; s.lq=[]
    def e(s,t): s.L.append("    "+t)
    def lab(s,t): s.L.append(t+":")
    def lds(s,t,dst=()):
        s.e(t); s.lq.append(set(dst))
    def need(s,regs):
        regs=set(regs); idx=-1
        for i,d in enumerate(s.lq):
            if d&regs: idx=i
        if idx>=0:
            n=len(s.lq)-1-idx
            s.e(f"s_waitcnt lgkmcnt({min(n,15)})")
            s.lq=s.lq[idx+1:]
    def drain(s):
        s.lq=[]
def ar(b,n): return [f"a{b+i}" for i in range(n)]
ACC=56; X0=108; NACC=52
def acc(j,k): return ACC+4*(3*k+j)
ACCR=ACC+48
def x0r(reg): return reg-ACC+X0
def SA(s,j): return 32*s+4*j
def SB(s,k): return 32*s+16+4*k
RAW=24; UNP=32; TMP=48
g=G(); e=g.e
e("s_cmp_ge_u32 s2, 256")
e("s_cbranch_scc1 L_done")
e("s_load_dwordx4 s[4:7], s[0:1], 0")
e("s_load_dwordx4 s[32:35], s[0:1], 16")
e("v_lshrrev_b32 v48, 6, v0")
e("v_and_b32 v49, 63, v0")
e("v_readfirstlane_b32 s24, v48")
e("s_mul_i32 s29, s2, %d"%TILEB)
e("s_waitcnt lgkmcnt(0)")
e("s_mov_b32 s8, s6"); e("s_and_b32 s9, s7, 0xffff"); e(f"s_mov_b32 s10, {WB}"); e("s_mov_b32 s11, 0x20000")
e("s_add_u32 s12, s4, s29"); e("s_addc_u32 s13, s5, 0"); e("s_and_b32 s13, s13, 0xffff"); e(f"s_mov_b32 s14, {TILEB}"); e("s_mov_b32 s15, 0x20000")
e("s_add_u32 s16, s34, s29"); e("s_addc_u32 s17, s35, 0"); e("s_and_b32 s17, s17, 0xffff"); e(f"s_mov_b32 s18, {TILEB}"); e("s_mov_b32 s19, 0x20000")
e("s_mov_b32 s20, s32"); e("s_and_b32 s21, s33, 0xffff"); e(f"s_mov_b32 s22, {L*ROWB}"); e("s_mov_b32 s23, 0x20000")
e("s_mov_b32 s30, 0xffff"); e("s_mov_b32 s31, 0")
e("s_mov_b32 s36, -1"); e("s_mov_b32 s37, 0xfffff")
e("s_lshl_b32 s46, s24, 2")
e("s_mul_i32 s47, s24, 3")
e("s_add_u32 s47, s47, 2")
e("s_cmp_lt_u32 s24, 2")
e("s_cselect_b32 s46, s46, s47")
e("s_lshl_b32 s27, s46, 10")
e("v_lshlrev_b32 v22, 4, v49")
e("v_xor_b32 v23, 16, v22")
e(f"s_mul_i32 s38, s24, {8*ROWB}")
e(f"s_mul_i32 s39, s24, {8*XS}")
e(f"s_add_u32 s39, s39, {XB}")
e("s_mov_b64 exec, s[36:37]")
for r in range(8):
    e("s_mov_b32 m0, s39")
    e(f"s_add_u32 s39, s39, {XS}")
    e(f"buffer_load_dwordx4 v{22+(r>>2)}, s[12:15], s38 offen lds")
    e(f"s_add_u32 s38, s38, {ROWB}")
e("s_mov_b64 exec, -1")
e("s_lshl_b32 s29, s46, 6")
e("s_movk_i32 s40, 1261")
for i in range(4):
    e(f"v_add_u32 v50, s29, v49")
    if i: e(f"v_add_u32 v50, {64*i}, v50")
    e("v_mul_lo_u32 v51, v50, s40")
    e("v_lshrrev_b32 v51, 16, v51")
    e("v_mul_u32_u24 v52, 52, v51")
    e("v_sub_u32 v52, v50, v52")
    e("v_bfe_u32 v53, v51, 3, 1")
    e("v_lshlrev_b32 v53, 1, v53")
    e("v_xor_b32 v52, v52, v53")
    e(f"v_mul_u32_u24 v51, {ROWB}, v51")
    e("v_lshl_add_u32 v51, v52, 4, v51")
    if i: e(f"v_subrev_u32 v{1+i}, {1024*i}, v51")
    else: e("v_mov_b32 v1, v51")
e("s_mov_b32 s25, 0")
LBL=0
def dma(slot_sreg):
    lst=[]
    lst.append(f"s_add_u32 m0, {slot_sreg}, s27")
    for i in range(3): lst.append(f"buffer_load_dwordx4 v{1+i}, s[8:11], s25 offen offset:{1024*i} lds")
    global LBL
    LBL+=1
    lst.append(f"s_cmp_lt_u32 s24, 2\n    s_cbranch_scc0 L_sk{LBL}\n    buffer_load_dwordx4 v4, s[8:11], s25 offen offset:3072 lds\nL_sk{LBL}:")
    lst.append(f"s_add_u32 s25, s25, {CH}")
    return lst
for c in range(4):
    e(f"s_mov_b32 s26, {c*CH}")
    l=dma("s26")
    e(l[0]); e("s_nop 0")
    for t in l[1:]: e(t)
e("s_mov_b32 s26, 0")
e("v_lshrrev_b32 v50, 4, v49")
e("v_bfe_u32 v51, v49, 2, 2")
e("v_and_b32 v52, 3, v49")
e("v_lshl_add_u32 v53, v50, 3, v51")
e(f"v_mul_u32_u24 v53, {ROWB}, v53")
e("v_lshl_add_u32 v53, v52, 3, v53")
e("v_and_b32 v54, 1, v50")
e("v_lshlrev_b32 v54, 5, v54")
e("s_mul_i32 s29, s24, 96")
e("v_add_u32 v55, s29, v53")
e("v_add_u32 v5, v55, v54")
e("v_sub_u32 v6, v55, v54")
e("s_and_b32 s40, s24, 1")
e("s_cmp_eq_u32 s40, 1")
e("s_cbranch_scc0 L_noswap")
e("v_mov_b32 v48, v5"); e("v_mov_b32 v5, v6"); e("v_mov_b32 v6, v48")
g.lab("L_noswap")
e("s_lshl_b32 s41, s40, 5")
e("v_xor_b32 v7, s41, v54")
e("v_add_u32 v7, v7, v53")
e("v_add_u32 v7, 768, v7")
e("v_mov_b32 v8, v5"); e("v_mov_b32 v9, v6"); e("v_mov_b32 v10, v7")
e("v_and_b32 v51, 15, v49")
e("v_bfe_u32 v52, v51, 2, 1")
e(f"v_mul_u32_u24 v53, {XS}, v51")
e(f"v_add_u32 v53, {XB}, v53")
e("v_xor_b32 v54, v50, v52")
e("v_lshl_add_u32 v54, v54, 4, v53")
e("v_lshrrev_b32 v55, 1, v50")
e("v_xor_b32 v55, v55, v52")
e("v_lshl_add_u32 v55, v55, 4, v53")
e("v_and_b32 v48, 1, v50")
e("v_lshl_add_u32 v55, v48, 3, v55")
e("s_lshr_b32 s42, s24, 1")
for k in range(4):
    e(f"s_add_u32 s44, s42, {k}")
    e("s_and_b32 s44, s44, 3")
    e(f"s_mul_i32 s44, s44, {16*XS}")
    e(f"v_add_u32 v{11+k}, s44, v54")
    e("s_add_u32 s45, s44, s29")
    e(f"v_add_u32 v{15+k}, s45, v55")
    if k==0:
        e("s_add_u32 s45, s44, s41")
        e("s_add_u32 s45, s45, 768")
        e("v_add_u32 v19, s45, v55")
e("v_lshlrev_b32 v50, 3, v50")
e("v_add_u32 v20, s29, v50")
e("v_add_u32 v21, s41, v50")
e("v_add_u32 v21, 768, v21")
e("s_mov_b32 s28, 0"); e("s_mov_b32 s43, 0")
if STAMP: e("s_memtime s[64:65]"); e("s_memrealtime s[98:99]")
for r in range(NACC): e(f"v_mov_b32 v{ACC+r}, 1.0")
if PRIO:
    e("s_cmp_ge_u32 s24, 4"); e("s_cbranch_scc0 L_np"); e("s_setprio 1"); g.lab("L_np")
e("s_waitcnt vmcnt(9)")
e("s_barrier")
if STAMP: e("s_memtime s[66:67]")
tiles=[(acc(j,k),15+k,32*j) for k in range(4) for j in range(3)]+[(ACCR,19,0)]
for (a,vb,off) in tiles:
    g.lds(f"ds_read_b64 v[{x0r(a)+2}:{x0r(a)+3}], v{vb} offset:{off}",[f"v{x0r(a)+2}"])
def rdA(s,j,lst):
    d=SA(s,j)
    vb = 10 if j==3 else (8 if j!=1 else 9)
    off = 0 if j==3 else 32*j
    lst.append(("lds",f"ds_read_b64_tr_b16 a[{d}:{d+1}], v{vb} offset:{off}",ar(d,2)))
    lst.append(("lds",f"ds_read_b64_tr_b16 a[{d+2}:{d+3}], v{vb} offset:{off+3328}",ar(d+2,2)))
def rdB(s,k,c,lst):
    d=SB(s,k)
    lst.append(("lds",f"ds_read_b128 a[{d}:{d+3}], v{11+k} offset:{64*c}",ar(d,4)))
def put(f):
    if NODMA and isinstance(f,str) and (f.startswith("buffer_load_dwordx4") or f.startswith("s_cmp_lt_u32 s24, 2")): return
    if NORD and isinstance(f,tuple) and "ds_read" in f[1]: return
    if isinstance(f,tuple): g.lds(f[1],f[2])
    else: e(f)
l=[]
for j in range(4): rdA(0,j,l)
for f in l: put(f)
for (a,vb,off) in tiles:
    qd=x0r(a)
    g.need([f"v{qd+2}"])
    e(f"v_lshlrev_b32 v{qd}, 16, v{qd+2}")
    e(f"v_and_b32 v{qd+1}, 0xffff0000, v{qd+2}")
    e(f"v_lshlrev_b32 v{qd+2}, 16, v{qd+3}")
    e(f"v_and_b32 v{qd+3}, 0xffff0000, v{qd+3}")
g.L.append(".p2align 6")
g.lab("L_layer")
order=[(0,0),(1,0),(2,0),(3,0)]+[(j,k) for k in range(1,4) for j in range(3)]
def mfma(s,j,k):
    a = ACCR if j==3 else acc(j,k)
    A=SA(s,j); B=SB(s,k)
    g.need(ar(A,4)+ar(B,4))
    if not NOMFMA: e(f"v_mfma_f32_16x16x32_bf16 v[{a}:{a+3}], a[{A}:{A+3}], a[{B}:{B+3}], v[{a}:{a+3}]")
def epi_tile(a,vb,off,tog):
    t=TMP+4*(tog&1)
    return [f"v_pk_mul_f32 v[{t}:{t+1}], v[{a}:{a+1}], v[{x0r(a)}:{x0r(a)+1}]",
            f"v_pk_mul_f32 v[{t+2}:{t+3}], v[{a+2}:{a+3}], v[{x0r(a)+2}:{x0r(a)+3}]",
            f"v_cvt_pk_bf16_f32 v{t}, v{t}, v{t+1}",
            f"v_cvt_pk_bf16_f32 v{t+1}, v{t+2}, v{t+3}",
            ("lds",f"ds_write_b64 v{vb}, v[{t}:{t+1}] offset:{off}",[])]
for c in range(13):
    s=c&1
    e(f"; ---- chunk {c}")
    if STAMP==1: e(f"s_memtime s[{68+2*c}:{69+2*c}]")
    nv = 10 if c in (1,2) else 6
    e(f"s_waitcnt vmcnt({nv}) lgkmcnt(0)"); g.drain()
    if not NOBAR: e("s_barrier")
    pre=[]
    if c==0:
        for k in range(4): rdB(0,k,0,pre)
        for f in pre: put(f)
    dl=dma("s26")
    fill=[dl[0], f"s_add_u32 s26, s26, {CH}", f"s_cmp_eq_u32 s26, {RING}", "s_cselect_b32 s26, 0, s26",
          "v_add_u32 v8, s26, v5","v_add_u32 v9, s26, v6","v_add_u32 v10, s26, v7"]
    rd=[]
    if c<12:
        rdA(1-s,0,rd); rdB(1-s,0,c+1,rd); rdA(1-s,1,rd); rdA(1-s,2,rd); rdA(1-s,3,rd)
        rdB(1-s,1,c+1,rd); rdB(1-s,2,c+1,rd); rdB(1-s,3,c+1,rd)
    bl=[]
    if c==0:
        for j in range(3): bl.append(f"buffer_load_dwordx2 v[{RAW+2*j}:{RAW+2*j+1}], v20, s[20:23], s43 offen offset:{32*j}")
        bl.append(f"buffer_load_dwordx2 v[{RAW+6}:{RAW+7}], v21, s[20:23], s43 offen")
    dm=dl[1:5]
    seq=fill+bl
    ri=0
    for i in range(4):
        seq+=rd[ri:ri+3]; ri+=3
        seq.append(dm[i])
    seq+=rd[ri:]; seq.append(dl[5])
    fi=0
    for p,(j,k) in enumerate(order):
        mfma(s,j,k)
        if c==4:
            if p<8:
                e(f"v_lshlrev_b32 v{UNP+2*p}, 16, v{RAW+p}")
                e(f"v_and_b32 v{UNP+2*p+1}, 0xffff0000, v{RAW+p}")
        if 5<=c<=8:
            (jj,kk)=order[(p-4)%13]
            a = ACCR if jj==3 else acc(jj,kk)
            e(f"v_add_f32 v{a+c-5}, v{UNP+4*jj+c-5}, v{a+c-5}")
        cap=3 if p<8 else 2
        while cap>0 and fi<len(seq):
            put(seq[fi]); fi+=1; cap-=1
    while fi<len(seq):
        put(seq[fi]); fi+=1
    if c==12:
        l=[]
        for j in range(4): rdA(0,j,l)
        for f in l: put(f)
        tl=[(ACCR if j==3 else acc(j,k), 19 if j==3 else 15+k, 0 if j==3 else 32*j) for (j,k) in order]
        for i,(a,vb,off) in enumerate(tl):
            if i==12: e("s_nop 3")
            for f in epi_tile(a,vb,off,i):
                if NOEPI==1: continue
                if NOEPI==2 and isinstance(f,tuple): continue
                put(f)
e("s_add_u32 s28, s28, 1")
e(f"s_add_u32 s43, s43, {ROWB}")
if STAMP==1: e("s_memtime s[94:95]")
e(f"s_cmp_lt_u32 s28, {L}")
e("s_cbranch_scc1 L_layer")
e("s_waitcnt lgkmcnt(0)"); g.drain()
e("s_barrier")
e(f"s_mul_i32 s38, s24, {8*ROWB}")
e(f"s_mul_i32 s39, s24, {8*XS}")
e(f"s_add_u32 s39, s39, {XB}")
e("v_add_u32 v48, s39, v22")
e("s_mov_b64 exec, s[36:37]")
for r in range(8):
    e(f"ds_read_b128 v[{56+4*r}:{56+4*r+3}], v48 offset:{r*XS}")
for r in range(8):
    e(f"s_waitcnt lgkmcnt({7-r})")
    e(f"buffer_store_dwordx4 v[{56+4*r}:{56+4*r+3}], v{22+(r>>2)}, s[16:19], s38 offen")
    e(f"s_add_u32 s38, s38, {ROWB}")
if STAMP:
    e("s_mov_b64 exec, -1")
    e("s_memtime s[96:97]")
    e("s_memrealtime s[100:101]")
    e("s_load_dwordx2 s[44:45], s[0:1], 32")
    e("s_waitcnt lgkmcnt(0)")
    e("s_cmp_lg_u32 s2, 0")
    e("s_cbranch_scc1 L_done")
    e("s_cmp_lg_u32 s24, 0")
    e("s_cbranch_scc1 L_done")
    e("s_and_b32 s45, s45, 0xffff"); e("s_mov_b32 s46, 256"); e("s_mov_b32 s47, 0x20000")
    e("v_mov_b32 v20, 0")
    for i in range(2,17):
        e(f"s_sub_u32 s48, s{64+2*i}, s64")
        e("v_mov_b32 v21, s48")
        e(f"buffer_store_dword v21, v20, s[44:47], 0 offen offset:{4*i}")
    e("s_sub_u32 s48, s100, s98")
    e("v_mov_b32 v21, s48")
    e("buffer_store_dword v21, v20, s[44:47], 0 offen offset:0")
    e("s_sub_u32 s48, s96, s64")
    e("v_mov_b32 v21, s48")
    e("buffer_store_dword v21, v20, s[44:47], 0 offen offset:4")
g.lab("L_done")
hdr=open("cdna_kernels/"+NAME+".s.ref").read().split("; Override launch")[0]
out=hdr+f"; @launch grid=(256,1,1) block=(512,1,1) lds={LDS}\n"
out+=f""".amdgcn_target "amdgcn-amd-amdhsa--gfx950"
.text
.globl {NAME}_kernel
.p2align 8
.type {NAME}_kernel,@function
{NAME}_kernel:
"""+"\n".join(g.L)+f"""
s_endpgm
.section .rodata,"a"
.p2align 6
.amdhsa_kernel {NAME}_kernel
  .amdhsa_next_free_vgpr 224
  .amdhsa_next_free_sgpr 102
  .amdhsa_accum_offset 160
  .amdhsa_group_segment_fixed_size 0
  .amdhsa_kernarg_size 48
  .amdhsa_user_sgpr_count 2
  .amdhsa_user_sgpr_kernarg_segment_ptr 1
  .amdhsa_system_sgpr_workgroup_id_x 1
.end_amdhsa_kernel
"""
open(sys.argv[1] if len(sys.argv)>1 else "cdna_kernels/"+NAME+".s","w").write(out)
print("LDS",LDS)
```

```python
import sys,os
def env(k,d=0): return int(os.environ.get(k,str(d)))
STAMP=env("STAMP"); NODMA=env("NODMA"); NORD=env("NORD"); NOMFMA=env("NOMFMA"); NOEPI=env("NOEPI"); NOBIAS=env("NOBIAS")
FRAC=env("FRAC",75); PRIO=env("PRIO",0); PF=env("PF",1); NT=env("NT",1); S=env("S",3); PD=env("PD",3)
NAME="standalone__cross_network_dcn__recsys"
D=416; L=6; ROWB=832; XS=864
CHG=26624; X0F=64*XS; BZ=X0F+104*1024; LDS=BZ+2048
WB=L*D*D*2
TILEB=64*ROWB
NST=13+S
def ustart(n):
    if n<=S: return n
    if n<=13: return S+2*(n-S)
    return S+2*(13-S)+(n-13)
def step_of_time(t):
    t%=26
    for n in range(NST-1,-1,-1):
        if ustart(n)<=t: return n
TLD={x:2*x-S-2*PD for x in range(13)}
LD={}
for x in range(13):
    t=TLD[x]
    n=step_of_time(t)
    LD.setdefault(n,[]).append(x+13 if t<0 else x)
PRELOAD=[x for x in range(13) if TLD[x]<0]
def alloc():
    iv={}
    for n,l in LD.items():
        for c in l:
            x=c%13
            st=n-NST if c>=13 else n
            iv[x]=(st,x+S)
    for m in range(4,12):
        asg={}
        def ok(x,s):
            for y,t in asg.items():
                if t!=s: continue
                for sh in (-NST,0,NST):
                    a0,a1=iv[x]; b0,b1=iv[y][0]+sh,iv[y][1]+sh
                    if not (a1<b0 or b1<a0): return False
            return True
        def rec(x):
            if x==13: return True
            for s in range(m):
                if ok(x,s):
                    asg[x]=s
                    if rec(x+1): return True
                    del asg[x]
            return False
        if rec(0): return m,[asg[x] for x in range(13)]
NSET,ASET=alloc()
class G:
    def __init__(s): s.L=[]; s.lq=[]; s.vq=[]
    def e(s,t): s.L.append("    "+t)
    def lab(s,t): s.L.append(t+":")
    def lds(s,t,dst=()):
        s.e(t); s.lq.append(set(dst))
    def need(s,regs):
        regs=set(regs); idx=-1
        for i,d in enumerate(s.lq):
            if d&regs: idx=i
        if idx>=0:
            n=len(s.lq)-1-idx
            s.e(f"s_waitcnt lgkmcnt({min(n,15)})")
            s.lq=s.lq[idx+1:]
    def drain(s): s.lq=[]
    def vm(s,t,tag):
        s.e(t); s.vq.append(tag)
    def vcount(s,tag):
        idx=-1
        for i,d in enumerate(s.vq):
            if d==tag: idx=i
        if idx<0: return None
        return len(s.vq)-1-idx
def ar(b,n): return [f"a{b+i}" for i in range(n)]
def vr(b,n): return [f"v{b+i}" for i in range(n)]
ACC=40; TMP=8; XT=16; RAW=32
def acc(j,k): return ACC+4*(4*k+j)
def SA(c,j): return 16*ASET[c%13]+4*j
def SB(k): return 16*NSET+4*k
NAG=16*NSET+16
WAITS={}
def build(final):
    g=G(); e=g.e
    LBL=[0]
    def newl(p):
        LBL[0]+=1; return f"L_{p}{LBL[0]}"
    e("s_cmp_ge_u32 s2, 256")
    e("s_cbranch_scc1 L_done")
    e("s_load_dwordx2 s[4:5], s[0:1], 0")
    e("s_load_dwordx4 s[32:35], s[0:1], 16")
    e("s_load_dwordx2 s[6:7], s[0:1], 40")
    e("v_lshrrev_b32 v48, 6, v0")
    e("v_and_b32 v49, 63, v0")
    e("v_readfirstlane_b32 s24, v48")
    e("s_mul_i32 s29, s2, %d"%TILEB)
    e("s_mov_b32 s36, -1"); e("s_mov_b32 s37, 0xfffff")
    e("v_lshlrev_b32 v50, 4, v49")
    e("s_and_b32 s40, s24, 1")
    e("s_lshl_b32 s40, s40, 4")
    e("v_xor_b32 v51, s40, v50")
    e(f"s_mul_i32 s38, s24, {4*ROWB}")
    e(f"s_mul_i32 s39, s24, {4*XS}")
    e("s_waitcnt lgkmcnt(0)")
    e("s_add_u32 s12, s4, s29"); e("s_addc_u32 s13, s5, 0"); e("s_and_b32 s13, s13, 0xffff"); e(f"s_mov_b32 s14, {TILEB}"); e("s_mov_b32 s15, 0x20000")
    def x0rows(tag,vreg):
        out=[]
        for r in range(4):
            out.append(("vm",f"s_mov_b32 m0, s39\n    s_mov_b64 exec, s[36:37]\n    buffer_load_dwordx4 v{vreg}, s[12:15], s38 offen"+(" nt" if NT else "")+f" lds\n    s_mov_b64 exec, -1\n    s_add_u32 s39, s39, {XS}\n    s_add_u32 s38, s38, {ROWB}",tag))
        return out
    def put(f):
        if isinstance(f,tuple):
            if f[0]=="dma":
                if not NODMA or f[2][1]<100: g.vm(f[1],f[2])
            elif f[0]=="vm": g.vm(f[1],f[2])
            elif f[0]=="lds":
                if NORD and "ds_read" in f[1]: return
                g.lds(f[1],f[2])
            elif f[0]=="need": g.need(f[1])
        else: e(f)
    for f in x0rows("xa",51): put(f)
    e(f"s_add_u32 s38, s38, {28*ROWB}")
    e(f"s_add_u32 s39, s39, {28*XS}")
    e("s_mov_b32 s8, s6"); e("s_and_b32 s9, s7, 0xffff"); e(f"s_mov_b32 s10, {WB}"); e("s_mov_b32 s11, 0x20000")
    e("s_lshl_b32 s46, s24, 2")
    e("s_mul_i32 s47, s24, 3")
    e("s_add_u32 s47, s47, 2")
    e("s_cmp_lt_u32 s24, 2")
    e("s_cselect_b32 s46, s46, s47")
    e("s_cselect_b32 s45, 0, 1")
    e("s_lshl_b32 s27, s46, 10")
    e("v_add_u32 v1, s27, v50")
    e("s_mov_b32 s25, 0")
    e("v_mov_b32 v38, v51")
    e("v_mov_b32 v37, v50")
    e("s_add_u32 s16, s34, s29"); e("s_addc_u32 s17, s35, 0"); e("s_and_b32 s17, s17, 0xffff"); e(f"s_mov_b32 s18, {TILEB}"); e("s_mov_b32 s19, 0x20000")
    e("s_mov_b32 s20, s32"); e("s_and_b32 s21, s33, 0xffff"); e(f"s_mov_b32 s22, {L*ROWB}"); e("s_mov_b32 s23, 0x20000")
    e("s_lshl_b32 s29, s46, 5")
    e("s_lshl_b32 s30, s46, 12")
    e(f"s_add_u32 s30, s30, {X0F}")
    e("v_add_u32 v2, s30, v50")
    e("v_lshrrev_b32 v52, 4, v49")
    e("v_lshrrev_b32 v55, 1, v52")
    e("v_and_b32 v56, 1, v52")
    e("v_and_b32 v53, 15, v49")
    e("v_bfe_u32 v54, v53, 2, 1")
    e(f"v_mul_u32_u24 v57, {XS}, v53")
    e("v_xor_b32 v58, v52, v54")
    e("v_lshl_add_u32 v3, v58, 4, v57")
    e("v_add_u32 v57, s29, v57")
    e("v_xor_b32 v58, v55, v54")
    e("v_lshl_add_u32 v57, v58, 4, v57")
    e("v_lshl_add_u32 v4, v56, 5, v57")
    e(f"v_mul_u32_u24 v58, {16*XS}, v56")
    e("v_add_u32 v5, v57, v58")
    e("v_add_u32 v5, 64, v5")
    e("v_lshl_add_u32 v7, v56, 3, v57")
    e("v_lshlrev_b32 v52, 3, v52")
    e(f"s_add_u32 s50, s29, {BZ}")
    e("v_add_u32 v6, s50, v52")
    e("s_mov_b32 s28, 0"); e(f"s_mov_b32 s43, {ROWB}"); e("s_mov_b32 s52, 0")
    e("s_lshr_b32 s41, s2, 3"); e("s_and_b32 s41, s41, 31"); e("s_mul_i32 s41, s41, 64896")
    e("v_lshlrev_b32 v36, 7, v0")
    if STAMP: e("s_memtime s[64:65]"); e("s_memrealtime s[98:99]")
    if PRIO:
        e("s_cmp_ge_u32 s24, 4"); e("s_cbranch_scc0 L_np"); e("s_setprio 1"); g.lab("L_np")
    e("s_cmp_eq_u32 s45, 1")
    e("s_cbranch_scc1 L_start3")
    common_vq=list(g.vq)
    def ldA(c,T,lay):
        tag=("A",lay*13+c)
        l=[("dma",f"buffer_load_dwordx4 a[{SA(c,j)}:{SA(c,j)+3}], v1, s[8:11], s25 offen offset:{1024*j}",tag) for j in range(T)]
        l.append(f"s_add_u32 s25, s25, {CHG}")
        return l
    def rdB(c,k):
        d=SB(k)
        return ("lds",f"ds_read_b128 a[{d}:{d+3}], v3 offset:{16*XS*k+64*(c%13)}",ar(d,4))
    def mfma(c,j,k):
        a=acc(j,k); A=SA(c,j); B=SB(k)
        g.need(ar(B,4))
        if not NOMFMA: e(f"v_mfma_f32_16x16x32_bf16 v[{a}:{a+3}], a[{A}:{A+3}], a[{B}:{B+3}], v[{a}:{a+3}]")
    XTOG=[0]
    def epi_pair(T,t1,t2,vb,off):
        if NOEPI==1: return [],[]
        xs=XT+8*(XTOG[0]&1); XTOG[0]+=1
        pf=[]; out=[]
        for n,(j,k) in enumerate((t1,t2)):
            pf.append(("lds",f"ds_read_b128 v[{xs+4*n}:{xs+4*n+3}], v2 offset:{1024*(T*k+j)}",vr(xs+4*n,4)))
        for n,(j,k) in enumerate((t1,t2)):
            a=acc(j,k)
            out.append(("need",vr(xs+4*n,4)))
            out+=[f"v_mul_f32 v{xs+4*n+i}, v{a+i}, v{xs+4*n+i}" for i in range(4)]
        for n in range(2):
            out+=[f"v_cvt_pk_bf16_f32 v{TMP+2*n}, v{xs+4*n}, v{xs+4*n+1}", f"v_cvt_pk_bf16_f32 v{TMP+2*n+1}, v{xs+4*n+2}, v{xs+4*n+3}"]
        out+=[f"s_nop 1\n    v_permlane16_swap_b32 v{TMP}, v{TMP+2}", f"v_permlane16_swap_b32 v{TMP+1}, v{TMP+3}",
              ("lds",f"ds_write_b128 v{vb}, v[{TMP}:{TMP+3}] offset:{off}",[])]
        if NOEPI==2: out=[f for f in out if not (isinstance(f,tuple) and f[0]=="lds")]
        if NOEPI==3: out=[f for f in out if not (isinstance(f,str) and "permlane" in f)]
        if NOEPI==4: pf=[]
        if NOEPI==5: out=[f for f in out if isinstance(f,tuple)]
        if NOEPI==6: pf=[]; out=[f for f in out if isinstance(f,str) and "permlane" not in f]
        return pf,out
    def epi_group(grp,T):
        k0=2*grp; res=[]
        for k in (k0,k0+1):
            for j in ((0,2) if T==4 else (0,)):
                res.append((T*(k-k0)+j+1,(j,k),(j+1,k),4,16*XS*k+32*j))
        if T==3:
            res.append((5,(2,k0),(2,k0+1),5,16*XS*k0))
        return res
    def epi_seq(T,items,minpos_fn):
        parts=[epi_pair(T,t1,t2,vb,off) for (rp,t1,t2,vb,off) in items]
        seq=[]
        for i,(pf,out) in enumerate(parts):
            mp=minpos_fn(items[i][0])
            if i==0:
                for f in pf: seq.append((0,f))
            nxt=parts[i+1][0] if i+1<len(parts) else []
            for q,f in enumerate(out):
                seq.append((mp,f))
                if q==2:
                    for f2 in nxt: seq.append((mp,f2))
        return seq
    BAR=(12,12+S,S-1)
    def epi_plan(T):
        n=len(epi_group(0,T))
        a_steps=list(range(12,12+S)); b_steps=[12+S]+list(range(0,S-1))
        def split(n,k,firstsmall):
            base=[n//k]*k
            for i in range(n%k): base[k-1-i]+=1
            return base
        return dict(zip(a_steps,split(n,S,0))), dict(zip(b_steps,split(n,S,1)))
    def vwait(T,site,tag,extra=""):
        n=g.vcount(tag)
        key=(T,site)
        if n is not None:
            WAITS[key]=min(WAITS.get(key,63),n)
        v=WAITS.get(key)
        return v
    def gen_step(T,n,lay,first,extra_seq=()):
        TA=[(j,k) for k in (0,1) for j in range(T)]; TB=[(j,k) for k in (2,3) for j in range(T)]
        EA=epi_group(0,T); EB=epi_group(1,T)
        pa,pb=epi_plan(T)
        e(f"; ---- T{T} step {n}")
        w=[]
        site=("f" if first else "l",n)
        tags=[]
        if n<=12: tags.append(("A",lay*13+n))
        if first and n==S-1: tags.append("xb")
        vs=[vwait(T,site+(i,),t) for i,t in enumerate(tags)]
        vs=[v for v in vs if v is not None]
        if vs: w.append(f"vmcnt({min(vs)})")
        if n in BAR: w.append("lgkmcnt(0)"); g.drain()
        if w: e("s_waitcnt "+" ".join(w))
        if n in BAR: e("s_barrier")
        if STAMP==1: e(f"s_memtime s[{66+2*n}:{67+2*n}]")
        if STAMP==3 and n==S:
            for q in range(6,0,-1): e(f"s_mov_b64 s[{66+2*q}:{67+2*q}], s[{64+2*q}:{65+2*q}]")
            e("s_memtime s[66:67]")
        ms=[]
        if n<=12: ms+=[(n,j,k) for (j,k) in TA]
        if n>=S: ms+=[(n-S,j,k) for (j,k) in TB]
        nm=len(ms)
        after={}
        for p,(c,j,k) in enumerate(ms):
            if j==T-1:
                if k<2 and n<=11: after[p]=[rdB(n+1,k)]
                if k>=2 and n-S<=11: after[p]=[rdB(n-S+1,k)]
        seq=[]
        if n==12+S: seq+=[rdB(0,0),rdB(0,1)]
        if n==S-1: seq+=[rdB(0,2),rdB(0,3)]
        seq+=list(extra_seq)
        for c in LD.get(n,[]): seq+=ldA(c%13,T,lay+(1 if c>=13 else 0))
        if n==S and not NOBIAS:
            for j in range(T): seq.append(("lds",f"ds_read_b64 v[{RAW+2*j}:{RAW+2*j+1}], v6 offset:{32*j}",[f"v{RAW+2*j}"]))
        if n==10:
            l=newl("nb")
            seq=seq+["v_xor_b32 v6, 0x400, v6","s_xor_b32 s52, s52, 0x400", f"s_add_u32 m0, s52, {BZ}"]
            if T==3:
                seq.append(f"s_cmp_eq_u32 s24, 7\n    s_cbranch_scc0 {l}\n    v_lshlrev_b32 v{TMP}, 4, v0\n    v_and_b32 v{TMP}, 0x3ff, v{TMP}\n    s_mov_b64 exec, s[36:37]\n    buffer_load_dwordx4 v{TMP}, s[20:23], s43 offen lds\n    s_mov_b64 exec, -1\n{l}:")
            seq.append(f"s_add_u32 s43, s43, {ROWB}")
        epi=[]
        if n in pa:
            st=sum(pa[m] for m in pa if m<n)
            epi=epi_seq(T,EA[st:st+pa[n]],(lambda rp:max(2*T,rp+4)) if n==12 else (lambda rp:1))
        if n in pb and not first:
            order=[12+S]+list(range(0,S-1))
            st=sum(pb[m] for m in order[:order.index(n)])
            epi=epi_seq(T,EB[st:st+pb[n]],(lambda rp:rp+4) if n==12+S else (lambda rp:2))
        fi=0; ei=0
        ngap_f=max(1,nm*FRAC//100)
        bj=n-(S+1)
        dobias = (0<=bj<T) and not NOBIAS
        tl=[(j,k) for k in range(4) for j in range(T)]
        cv=tl[2*(n-S):2*(n-S)+2] if S<=n<=S+7 else []
        for p,(c,j,k) in enumerate(ms):
            mfma(c,j,k)
            for f in after.get(p,[]): put(f)
            if cv and p==nm//2:
                l=newl("cv")
                e("s_cmp_eq_u32 s28, 0"); e(f"s_cbranch_scc0 {l}")
                for q,(jj,kk) in enumerate(cv):
                    e(f"ds_read_b64 v[{XT+4*q+2}:{XT+4*q+3}], v7 offset:{16*XS*kk+32*jj}")
                e("s_waitcnt lgkmcnt(0)")
                for q,(jj,kk) in enumerate(cv):
                    qd=XT+4*q
                    e(f"v_lshlrev_b32 v{qd}, 16, v{qd+2}")
                    e(f"v_and_b32 v{qd+1}, 0xffff0000, v{qd+2}")
                    e(f"v_lshlrev_b32 v{qd+2}, 16, v{qd+3}")
                    e(f"v_and_b32 v{qd+3}, 0xffff0000, v{qd+3}")
                    e(f"ds_write_b128 v2, v[{qd}:{qd+3}] offset:{1024*(T*kk+jj)}")
                g.lab(l)
            if dobias:
                if p==0:
                    rb=RAW+2*bj
                    g.need([f"v{rb}"])
                    e(f"v_lshlrev_b32 v{TMP}, 16, v{rb}"); e(f"v_and_b32 v{TMP+1}, 0xffff0000, v{rb}")
                    e(f"v_lshlrev_b32 v{TMP+2}, 16, v{rb+1}"); e(f"v_and_b32 v{TMP+3}, 0xffff0000, v{rb+1}")
                for hh in range(2):
                    (_,jj,kk)=ms[(p-5-hh)%nm]
                    if jj==bj:
                        a=acc(jj,kk)
                        for r in (2*hh,2*hh+1): e(f"v_add_f32 v{a+r}, v{TMP+r}, v{a+r}")
            tgt=-(-len(seq)*(p+1)//ngap_f)
            while fi<min(tgt,len(seq)):
                put(seq[fi]); fi+=1
            rem_g=nm-p
            if epi[ei:] and epi[ei][0]<=p:
                take=-(-len(epi[ei:])//rem_g)
                while take>0 and ei<len(epi) and epi[ei][0]<=p:
                    put(epi[ei][1]); ei+=1; take-=1
        while fi<len(seq): put(seq[fi]); fi+=1
        if ei<len(epi): e("s_nop 7")
        while ei<len(epi): put(epi[ei][1]); ei+=1
    def gen_type(T):
        g.vq=list(common_vq); g.drain()
        g.lab(f"L_start{T}")
        for c in PRELOAD[:2]:
            for f in ldA(c,T,0): put(f)
        for k in range(4):
            for j in range(T):
                for i in range(4): e(f"v_mov_b32 v{acc(j,k)+i}, 1.0")
        v=vwait(T,("p",0),"xa")
        e(f"s_waitcnt vmcnt({v})")
        e("s_barrier")
        for f in [rdB(0,0),rdB(0,1)]: put(f)
        rest=x0rows("xb",38)
        if T==3:
            rest.append(f"s_cmp_eq_u32 s24, 7\n    s_cbranch_scc0 L_nb0\n    s_mov_b32 m0, {BZ}\n    s_mov_b64 exec, s[36:37]\n    buffer_load_dwordx4 v37, s[20:23], 0 offen lds\n    s_mov_b64 exec, -1\nL_nb0:")
        for c in PRELOAD[2:]: rest+=ldA(c,T,0)
        if PF: rest.append(("vm","buffer_load_dword v39, v36, s[8:11], s41 offen","pf"))
        for n in range(S):
            gen_step(T,n,0,True,rest if n==0 else ())
        e(f"s_branch L_sS_{T}")
        saveL=len(g.L); lq=list(g.lq)
        g.L.append(".p2align 6")
        g.lab(f"L_layer{T}")
        mark=len(g.L)
        vq_entry=list(g.vq)
        for n in range(S,NST): gen_step(T,n,0,False)
        g.drain()
        for n in range(0,S): gen_step(T,n,1,False)
        for n in range(S,NST): gen_step(T,n,1,False)
        g.drain()
        del g.L[mark:]
        g.drain()
        for n in range(NST):
            if n==S: g.lab(f"L_sS_{T}");
            if n==S: g.drain()
            gen_step(T,n,2,False)
        e("s_add_u32 s28, s28, 1")
        e(f"s_cmp_lt_u32 s28, {L}")
        e("s_waitcnt lgkmcnt(0)"); g.drain()
        e(f"s_cbranch_scc1 L_layer{T}")
        e("s_nop 7")
        pa,pb=epi_plan(T)
        for (mp,f) in epi_seq(T,epi_group(1,T)[pb[12+S]:],lambda rp:0): put(f)
        e("s_branch L_fin")
    gen_type(4); g.drain()
    gen_type(3); g.drain()
    g.lab("L_fin")
    e("s_waitcnt lgkmcnt(0)")
    e("s_barrier")
    e("v_and_b32 v49, 63, v0")
    e("v_lshlrev_b32 v50, 4, v49")
    e("v_xor_b32 v51, 16, v50")
    e(f"s_mul_i32 s38, s24, {8*ROWB}")
    e(f"s_mul_i32 s39, s24, {8*XS}")
    e("v_add_u32 v48, s39, v50")
    e("s_mov_b64 exec, s[36:37]")
    for r in range(8):
        e(f"ds_read_b128 v[{56+4*r}:{56+4*r+3}], v48 offset:{r*XS}")
    for r in range(8):
        e(f"s_waitcnt lgkmcnt({7-r})")
        e(f"buffer_store_dwordx4 v[{56+4*r}:{56+4*r+3}], v{50+((r>>2)&1)}, s[16:19], s38 offen"+(" nt" if NT else ""))
        e(f"s_add_u32 s38, s38, {ROWB}")
    if STAMP:
        e("s_mov_b64 exec, -1")
        e("s_memtime s[96:97]")
        e("s_memrealtime s[100:101]")
        e("s_load_dwordx2 s[44:45], s[0:1], 32")
        e("s_waitcnt lgkmcnt(0)")
        e("s_cmp_lg_u32 s2, 0")
        e("s_cbranch_scc1 L_done")
        e("s_cmp_lg_u32 s24, 0")
        e("s_cbranch_scc1 L_done")
        e("s_and_b32 s45, s45, 0xffff"); e("s_mov_b32 s46, 256"); e("s_mov_b32 s47, 0x20000")
        e("v_mov_b32 v20, 0")
        for i in range(15):
            e(f"s_sub_u32 s48, s{66+2*i}, s64")
            e("v_mov_b32 v21, s48")
            e(f"buffer_store_dword v21, v20, s[44:47], 0 offen offset:{8+4*i}")
        e("s_sub_u32 s48, s100, s98")
        e("v_mov_b32 v21, s48")
        e("buffer_store_dword v21, v20, s[44:47], 0 offen offset:0")
        e("s_sub_u32 s48, s96, s64")
        e("v_mov_b32 v21, s48")
        e("buffer_store_dword v21, v20, s[44:47], 0 offen offset:4")
    g.lab("L_done")
    return g.L
P=[]; a=P.append
a("s_cmp_ge_u32 s2, 78"); a("s_cbranch_scc1 L_pdone")
a("s_load_dwordx2 s[4:5], s[0:1], 8"); a("s_load_dwordx2 s[6:7], s[0:1], 40")
a("v_lshrrev_b32 v1, 6, v0"); a("v_and_b32 v2, 63, v0"); a("v_readfirstlane_b32 s12, v1")
a("s_mul_i32 s13, s2, 26624")
a("s_waitcnt lgkmcnt(0)")
a("s_add_u32 s8, s4, s13"); a("s_addc_u32 s9, s5, 0"); a("s_and_b32 s9, s9, 0xffff"); a("s_mov_b32 s10, 26624"); a("s_mov_b32 s11, 0x20000")
a("s_add_u32 s16, s6, s13"); a("s_addc_u32 s17, s7, 0"); a("s_and_b32 s17, s17, 0xffff"); a("s_mov_b32 s18, 26624"); a("s_mov_b32 s19, 0x20000")
a("s_movk_i32 s40, 1261")
for i in range(4):
    a(f"s_add_u32 s14, s12, {8*i}")
    a("s_lshl_b32 s15, s14, 6")
    a("v_add_u32 v3, s15, v2")
    a("v_mul_lo_u32 v4, v3, s40"); a("v_lshrrev_b32 v4, 16, v4")
    a("v_mul_u32_u24 v5, 52, v4"); a("v_sub_u32 v5, v3, v5")
    a("v_bfe_u32 v6, v4, 3, 1"); a("v_lshlrev_b32 v6, 1, v6"); a("v_xor_b32 v5, v5, v6")
    a("v_mul_u32_u24 v4, 832, v4"); a("v_lshl_add_u32 v4, v5, 4, v4")
    a("s_lshl_b32 m0, s14, 10")
    if i==3:
        a("s_cmp_lt_u32 s12, 2"); a("s_cbranch_scc0 L_p3")
    else: a("s_nop 0")
    a("buffer_load_dwordx4 v4, s[8:11], 0 offen"+(" nt" if NT else "")+" lds")
    if i==3: a("L_p3:")
a("v_lshrrev_b32 v10, 4, v2"); a("v_bfe_u32 v11, v2, 2, 2"); a("v_and_b32 v12, 3, v2")
a("v_lshl_add_u32 v13, v10, 3, v11"); a("v_mul_u32_u24 v13, 832, v13"); a("v_lshl_add_u32 v13, v12, 3, v13")
a("v_and_b32 v14, 1, v10")
a("v_lshlrev_b32 v15, 4, v2")
a("s_waitcnt vmcnt(0)"); a("s_barrier")
for i in range(4):
    a(f"s_add_u32 s14, s12, {8*i}")
    a("v_xor_b32 v16, s14, v14"); a("v_lshl_add_u32 v16, v16, 5, v13")
    if i==3:
        a("s_cmp_lt_u32 s12, 2"); a("s_cbranch_scc0 L_pdone")
    a(f"ds_read_b64_tr_b16 v[{20+4*i}:{21+4*i}], v16"); a(f"ds_read_b64_tr_b16 v[{22+4*i}:{23+4*i}], v16 offset:3328")
    a("s_lshl_b32 s15, s14, 10")
    a("s_waitcnt lgkmcnt(0)")
    a(f"buffer_store_dwordx4 v[{20+4*i}:{23+4*i}], v15, s[16:19], s15 offen")
a("L_pdone:")
PRE="\n".join(("    "+x if not x.endswith(":") else x) for x in P)
build(False)
body=build(True)
hdr=open("cdna_kernels/"+NAME+".s.ref").read().split("; Override launch")[0]
out=hdr+f"; @launch kernel=dcn_pre_kernel grid=(78,1,1) block=(512,1,1) lds=26624\n; @launch kernel={NAME}_kernel grid=(256,1,1) block=(512,1,1) lds={LDS}\n"
def kd(name,nfv,acc_off): return f""".p2align 6
.amdhsa_kernel {name}
  .amdhsa_next_free_vgpr {nfv}
  .amdhsa_next_free_sgpr 102
  .amdhsa_accum_offset {acc_off}
  .amdhsa_group_segment_fixed_size 0
  .amdhsa_kernarg_size 48
  .amdhsa_user_sgpr_count 2
  .amdhsa_user_sgpr_kernarg_segment_ptr 1
  .amdhsa_system_sgpr_workgroup_id_x 1
.end_amdhsa_kernel
"""
out+=f""".amdgcn_target "amdgcn-amd-amdhsa--gfx950"
.text
.globl dcn_pre_kernel
.p2align 8
.type dcn_pre_kernel,@function
dcn_pre_kernel:
{PRE}
s_endpgm
.globl {NAME}_kernel
.p2align 8
.type {NAME}_kernel,@function
{NAME}_kernel:
"""+"\n".join(body)+f"""
s_endpgm
.section .rodata,"a"
"""+kd("dcn_pre_kernel",64,64)+kd(NAME+"_kernel",104+NAG,104)
open(sys.argv[1] if len(sys.argv)>1 else "cdna_kernels/"+NAME+".s","w").write(out)
print("LDS",LDS,"NSET",NSET,ASET,"LD",dict(sorted(LD.items())),"PRE",PRELOAD,"nfv",104+NAG)
print({k:v for k,v in sorted(WAITS.items(),key=str) if k[0]==4})
```

```python
import sys,os
def env(k,d=0): return int(os.environ.get(k,str(d)))
STAMP=env("STAMP"); NODMA=env("NODMA"); NORD=env("NORD"); NOMFMA=env("NOMFMA"); NOEPI=env("NOEPI"); NOBIAS=env("NOBIAS")
FRAC=env("FRAC",75); PRIO=env("PRIO",0); PF=env("PF",0); SW=env("SW",0); NT=env("NT",1); S=env("S",2); PD=env("PD",3); XPF=env("XPF",3); STG=env("STG",0); PF2=env("PF2",0); PFS=env("PFS",0)
NAME="standalone__cross_network_dcn__recsys"
D=416; L=6; ROWB=832; XS=864
CHG=26624; X0F=64*XS; BZ=X0F+104*1024; LDS=BZ+2048
WB=L*D*D*2
TILEB=64*ROWB
NST=13+S
def ustart(n):
    if n<=S: return n
    if n<=13: return S+2*(n-S)
    return S+2*(13-S)+(n-13)
def step_of_time(t):
    t%=26
    for n in range(NST-1,-1,-1):
        if ustart(n)<=t: return n
TLD={x:2*x-S-2*PD for x in range(13)}
LD={}
for x in range(13):
    t=TLD[x]
    n=step_of_time(t)
    LD.setdefault(n,[]).append(x+13 if t<0 else x)
PRELOAD=[x for x in range(13) if TLD[x]<0]
def alloc():
    iv={}
    for n,l in LD.items():
        for c in l:
            x=c%13
            st=n-NST if c>=13 else n
            iv[x]=(st,x+S)
    for m in range(4,12):
        asg={}
        def ok(x,s):
            for y,t in asg.items():
                if t!=s: continue
                for sh in (-NST,0,NST):
                    a0,a1=iv[x]; b0,b1=iv[y][0]+sh,iv[y][1]+sh
                    if not (a1<b0 or b1<a0): return False
            return True
        def rec(x):
            if x==13: return True
            for s in range(m):
                if ok(x,s):
                    asg[x]=s
                    if rec(x+1): return True
                    del asg[x]
            return False
        if rec(0): return m,[asg[x] for x in range(13)]
NSET,ASET=alloc()
class G:
    def __init__(s): s.L=[]; s.lq=[]; s.vq=[]
    def e(s,t): s.L.append("    "+t)
    def lab(s,t): s.L.append(t+":")
    def lds(s,t,dst=()):
        s.e(t); s.lq.append(set(dst))
    def need(s,regs):
        regs=set(regs); idx=-1
        for i,d in enumerate(s.lq):
            if d&regs: idx=i
        if idx>=0:
            n=len(s.lq)-1-idx
            s.e(f"s_waitcnt lgkmcnt({min(n,15)})")
            s.lq=s.lq[idx+1:]
    def drain(s): s.lq=[]
    def vm(s,t,tag):
        s.e(t); s.vq.append(tag)
    def vcount(s,tag):
        idx=-1
        for i,d in enumerate(s.vq):
            if d==tag: idx=i
        if idx<0: return None
        return len(s.vq)-1-idx
def ar(b,n): return [f"a{b+i}" for i in range(n)]
def vr(b,n): return [f"v{b+i}" for i in range(n)]
TMP=8; XT=16; RAW=XT+8*XPF; ACC=RAW+8; NV=ACC+64
def acc(j,k): return ACC+4*(4*k+j)
def SA(c,j): return 16*ASET[c%13]+4*j
def SB(k): return 16*NSET+4*k
NAG=16*NSET+16
WAITS={}
def build(final):
    g=G(); e=g.e
    LBL=[0]
    def newl(p):
        LBL[0]+=1; return f"L_{p}{LBL[0]}"
    e("s_cmp_ge_u32 s2, 256")
    e("s_cbranch_scc1 L_done")
    if STAMP==4: e("s_memtime s[90:91]")
    e("s_load_dwordx2 s[4:5], s[0:1], 0")
    e("s_load_dwordx4 s[32:35], s[0:1], 16")
    e("s_load_dwordx2 s[6:7], s[0:1], 40")
    e("v_lshrrev_b32 v48, 6, v0")
    e("v_and_b32 v49, 63, v0")
    e("v_readfirstlane_b32 s24, v48")
    e("s_mul_i32 s29, s2, %d"%TILEB)
    e("s_mov_b32 s36, -1"); e("s_mov_b32 s37, 0xfffff")
    e("v_lshlrev_b32 v50, 4, v49")
    e("s_and_b32 s40, s24, 1")
    e("s_lshl_b32 s40, s40, 4")
    e("v_xor_b32 v51, s40, v50")
    e(f"s_mul_i32 s38, s24, {4*ROWB}")
    e(f"s_mul_i32 s39, s24, {4*XS}")
    e("s_waitcnt lgkmcnt(0)")
    e("s_add_u32 s12, s4, s29"); e("s_addc_u32 s13, s5, 0"); e("s_and_b32 s13, s13, 0xffff"); e(f"s_mov_b32 s14, {TILEB}"); e("s_mov_b32 s15, 0x20000")
    def x0rows(tag,vreg):
        out=[]
        for r in range(4):
            out.append(("vm",f"s_mov_b32 m0, s39\n    s_mov_b64 exec, s[36:37]\n    buffer_load_dwordx4 v{vreg}, s[12:15], s38 offen"+(" nt" if NT else "")+f" lds\n    s_mov_b64 exec, -1\n    s_add_u32 s39, s39, {XS}\n    s_add_u32 s38, s38, {ROWB}",tag))
        return out
    def put(f):
        if isinstance(f,tuple):
            if f[0]=="dma":
                if not NODMA or f[2][1]<100: g.vm(f[1],f[2])
            elif f[0]=="vm": g.vm(f[1],f[2])
            elif f[0]=="lds":
                if NORD and "ds_read" in f[1]: return
                g.lds(f[1],f[2])
            elif f[0]=="need": g.need(f[1])
        else: e(f)
    for f in x0rows("xa",51): put(f)
    e(f"s_add_u32 s38, s38, {28*ROWB}")
    e(f"s_add_u32 s39, s39, {28*XS}")
    e("s_mov_b32 s8, s6"); e("s_and_b32 s9, s7, 0xffff"); e(f"s_mov_b32 s10, {WB}"); e("s_mov_b32 s11, 0x20000")
    e("s_lshl_b32 s46, s24, 2")
    e("s_mul_i32 s47, s24, 3")
    e("s_add_u32 s47, s47, 2")
    e("s_cmp_lt_u32 s24, 2")
    e("s_cselect_b32 s46, s46, s47")
    e("s_cselect_b32 s45, 0, 1")
    e("s_lshl_b32 s27, s46, 10")
    e("v_add_u32 v1, s27, v50")
    e("s_mov_b32 s25, 0")
    e(f"v_mov_b32 v{RAW+6}, v51")
    e(f"v_mov_b32 v{RAW+5}, v50")
    e("s_add_u32 s16, s34, s29"); e("s_addc_u32 s17, s35, 0"); e("s_and_b32 s17, s17, 0xffff"); e(f"s_mov_b32 s18, {TILEB}"); e("s_mov_b32 s19, 0x20000")
    e("s_mov_b32 s20, s32"); e("s_and_b32 s21, s33, 0xffff"); e(f"s_mov_b32 s22, {L*ROWB}"); e("s_mov_b32 s23, 0x20000")
    e("s_lshl_b32 s29, s46, 5")
    e("s_lshl_b32 s30, s46, 12")
    e(f"s_add_u32 s30, s30, {X0F}")
    e("v_add_u32 v2, s30, v50")
    e("v_lshrrev_b32 v52, 4, v49")
    e("v_lshrrev_b32 v55, 1, v52")
    e("v_and_b32 v56, 1, v52")
    e("v_and_b32 v53, 15, v49")
    e("v_bfe_u32 v54, v53, 2, 1")
    e(f"v_mul_u32_u24 v57, {XS}, v53")
    e("v_xor_b32 v58, v52, v54")
    e("v_lshl_add_u32 v3, v58, 4, v57")
    e("v_add_u32 v57, s29, v57")
    e("v_xor_b32 v58, v55, v54")
    e("v_lshl_add_u32 v57, v58, 4, v57")
    e("v_lshl_add_u32 v4, v56, 5, v57")
    e(f"v_mul_u32_u24 v58, {16*XS}, v56")
    e("v_add_u32 v5, v57, v58")
    e("v_add_u32 v5, 64, v5")
    e("v_lshl_add_u32 v7, v56, 3, v57")
    e("v_lshlrev_b32 v52, 3, v52")
    e(f"s_add_u32 s50, s29, {BZ}")
    e("v_add_u32 v6, s50, v52")
    e("s_mov_b32 s28, 0"); e(f"s_mov_b32 s43, {ROWB}"); e("s_mov_b32 s52, 0")
    e("s_lshr_b32 s41, s2, 3"); e("s_and_b32 s41, s41, 31")
    e("s_mul_i32 s57, s41, 10816"); e(f"s_add_u32 s57, s57, {346112-6*8192}")
    e("s_mul_i32 s41, s41, 64896")
    e(f"v_lshlrev_b32 v{RAW+4}, 7, v0")
    if STAMP: e("s_memtime s[64:65]"); e("s_memrealtime s[98:99]")
    if PRIO:
        e("s_cmp_ge_u32 s24, 4"); e("s_cbranch_scc0 L_np"); e("s_setprio 1"); g.lab("L_np")
    e("s_cmp_eq_u32 s45, 1")
    e("s_cbranch_scc1 L_start3")
    common_vq=list(g.vq)
    def ldA(c,T,lay):
        tag=("A",lay*13+c)
        l=[("dma",f"buffer_load_dwordx4 a[{SA(c,j)}:{SA(c,j)+3}], v1, s[8:11], s25 offen offset:{1024*j}",tag) for j in range(T)]
        l.append(f"s_add_u32 s25, s25, {CHG}")
        return l
    def rdB(c,k):
        d=SB(k)
        return ("lds",f"ds_read_b128 a[{d}:{d+3}], v3 offset:{16*XS*k+64*(c%13)}",ar(d,4))
    def mfma(c,j,k):
        a=acc(j,k); A=SA(c,j); B=SB(k)
        g.need(ar(B,4))
        if not NOMFMA: e(f"v_mfma_f32_16x16x32_bf16 v[{a}:{a+3}], a[{A}:{A+3}], a[{B}:{B+3}], v[{a}:{a+3}]")
    XTOG=[0]
    def epi_pair(T,t1,t2,vb,off):
        if NOEPI==1: return [],[]
        xs=XT+8*(XTOG[0]%XPF); XTOG[0]+=1
        pf=[]; out=[]
        for n,(j,k) in enumerate((t1,t2)):
            pf.append(("lds",f"ds_read_b128 v[{xs+4*n}:{xs+4*n+3}], v2 offset:{1024*(T*k+j)}",vr(xs+4*n,4)))
        for n,(j,k) in enumerate((t1,t2)):
            a=acc(j,k)
            out.append(("need",vr(xs+4*n,4)))
            out+=[f"v_mul_f32 v{xs+4*n+i}, v{a+i}, v{xs+4*n+i}" for i in range(4)]
        for n in range(2):
            out+=[f"v_cvt_pk_bf16_f32 v{TMP+2*n}, v{xs+4*n}, v{xs+4*n+1}", f"v_cvt_pk_bf16_f32 v{TMP+2*n+1}, v{xs+4*n+2}, v{xs+4*n+3}"]
        out+=[f"s_nop 1\n    v_permlane16_swap_b32 v{TMP}, v{TMP+2}", f"v_permlane16_swap_b32 v{TMP+1}, v{TMP+3}",
              ("lds",f"ds_write_b128 v{vb}, v[{TMP}:{TMP+3}] offset:{off}",[])]
        if NOEPI==2: out=[f for f in out if not (isinstance(f,tuple) and f[0]=="lds")]
        if NOEPI==3: out=[f for f in out if not (isinstance(f,str) and "permlane" in f)]
        if NOEPI==4: pf=[]
        if NOEPI==5: out=[f for f in out if isinstance(f,tuple)]
        if NOEPI==6: pf=[]; out=[f for f in out if isinstance(f,str) and "permlane" not in f]
        return pf,out
    def epi_group(grp,T):
        k0=2*grp; res=[]
        for k in (k0,k0+1):
            for j in ((0,2) if T==4 else (0,)):
                res.append((T*(k-k0)+j+1,(j,k),(j+1,k),4,16*XS*k+32*j))
        if T==3:
            res.append((5,(2,k0),(2,k0+1),5,16*XS*k0))
        return res
    def epi_seq(T,items,minpos_fn):
        parts=[epi_pair(T,t1,t2,vb,off) for (rp,t1,t2,vb,off) in items]
        seq=[]
        la=XPF-1
        for i in range(min(la,len(parts))):
            for f in parts[i][0]: seq.append((0,f))
        for i,(pf,out) in enumerate(parts):
            mp=minpos_fn(items[i][0])
            nxt=parts[i+la][0] if i+la<len(parts) else []
            for q,f in enumerate(out):
                seq.append((mp,f))
                if q==0:
                    for f2 in nxt: seq.append((mp,f2))
        return seq
    BAR=(12,12+S,S-1)
    def epi_plan(T):
        n=len(epi_group(0,T))
        a_steps=list(range(12,12+S)); b_steps=[12+S]+list(range(0,S-1))
        def split(n,k,firstsmall):
            base=[n//k]*k
            for i in range(n%k): base[k-1-i]+=1
            return base
        if STG and S==3:
            if T==4: pl=[2,2,0]
            else: pl=[0,1,2]
            return dict(zip(a_steps,pl)), dict(zip(b_steps,pl))
        if STG and S==2:
            if T==4: pl=[3,1]
            else: pl=[0,3]
            return dict(zip(a_steps,pl)), dict(zip(b_steps,pl))
        return dict(zip(a_steps,split(n,S,0))), dict(zip(b_steps,split(n,S,1)))
    def vwait(T,site,tag,extra=""):
        n=g.vcount(tag)
        key=(T,site)
        if n is not None:
            WAITS[key]=min(WAITS.get(key,63),n)
        v=WAITS.get(key)
        return v
    def gen_step(T,n,lay,first,extra_seq=()):
        TA=[(j,k) for k in (0,1) for j in range(T)]; TB=[(j,k) for k in (2,3) for j in range(T)]
        EA=epi_group(0,T); EB=epi_group(1,T)
        pa,pb=epi_plan(T)
        e(f"; ---- T{T} step {n}")
        w=[]
        site=("f" if first else "l",n)
        tags=[]
        if n<=12: tags.append(("A",lay*13+n))
        if first and n==S-1: tags.append("xb")
        vs=[vwait(T,site+(i,),t) for i,t in enumerate(tags)]
        vs=[v for v in vs if v is not None]
        if vs: w.append(f"vmcnt({min(vs)})")
        if n in BAR: w.append("lgkmcnt(0)"); g.drain()
        if w: e("s_waitcnt "+" ".join(w))
        if n in BAR: e("s_barrier")
        if STAMP==1: e(f"s_memtime s[{66+2*n}:{67+2*n}]")
        if STAMP==4 and first: e(f"s_memtime s[{72+2*n}:{73+2*n}]")
        if STAMP==4 and not first and S<=n<=S+5:
            l=newl("st"); e("s_cmp_eq_u32 s28, 0"); e(f"s_cbranch_scc0 {l}"); e(f"s_memtime s[{72+2*n}:{73+2*n}]"); g.lab(l)
        if STAMP==3 and n==S:
            for q in range(6,0,-1): e(f"s_mov_b64 s[{66+2*q}:{67+2*q}], s[{64+2*q}:{65+2*q}]")
            e("s_memtime s[66:67]")
        ms=[]
        if n<=12: ms+=[(n,j,k) for (j,k) in TA]
        if n>=S: ms+=[(n-S,j,k) for (j,k) in TB]
        nm=len(ms)
        after={}
        for p,(c,j,k) in enumerate(ms):
            if j==T-1:
                if k<2 and n<=11: after[p]=[rdB(n+1,k)]
                if k>=2 and n-S<=11: after[p]=[rdB(n-S+1,k)]
        seq=[]
        if n==12+S: seq+=[rdB(0,0),rdB(0,1)]
        if n==S-1: seq+=[rdB(0,2),rdB(0,3)]
        seq+=list(extra_seq)
        for c in LD.get(n,[]): seq+=ldA(c%13,T,lay+(1 if c>=13 else 0))
        if n==S and not NOBIAS:
            for j in range(T): seq.append(("lds",f"ds_read_b64 v[{RAW+2*j}:{RAW+2*j+1}], v6 offset:{32*j}",[f"v{RAW+2*j}"]))
        if PF and PFS and n==PFS and not first:
            l=newl("pf")
            seq.append(f"s_cmp_eq_u32 s28, 0\n    s_cbranch_scc0 {l}\n    v_lshlrev_b32 v{TMP+6}, 7, v0\n    buffer_load_dword v{TMP+7}, v{TMP+6}, s[8:11], s41 offen\n{l}:")
        if PF2 and n==PF2 and T==3 and not first:
            l=newl("pf")
            seq.append(f"s_cmp_ge_u32 s24, 6\n    s_cbranch_scc0 {l}\n    v_lshlrev_b32 v{TMP+6}, 7, v0\n    buffer_load_dword v{TMP+7}, v{TMP+6}, s[8:11], s57 offen\n    s_add_u32 s57, s57, 346112\n{l}:")
        if n==10:
            l=newl("nb")
            seq=seq+["v_xor_b32 v6, 0x400, v6","s_xor_b32 s52, s52, 0x400", f"s_add_u32 m0, s52, {BZ}"]
            if T==3:
                seq.append(f"s_cmp_eq_u32 s24, 7\n    s_cbranch_scc0 {l}\n    v_lshlrev_b32 v{TMP}, 4, v0\n    v_and_b32 v{TMP}, 0x3ff, v{TMP}\n    s_mov_b64 exec, s[36:37]\n    buffer_load_dwordx4 v{TMP}, s[20:23], s43 offen lds\n    s_mov_b64 exec, -1\n{l}:")
            seq.append(f"s_add_u32 s43, s43, {ROWB}")
        epi=[]
        if n in pa:
            st=sum(pa[m] for m in pa if m<n)
            epi=epi_seq(T,EA[st:st+pa[n]],(lambda rp:max(2*T,rp+4)) if n==12 else (lambda rp:1))
        if n in pb and not first:
            order=[12+S]+list(range(0,S-1))
            st=sum(pb[m] for m in order[:order.index(n)])
            epi=epi_seq(T,EB[st:st+pb[n]],(lambda rp:rp+4) if n==12+S else (lambda rp:2))
        fi=0; ei=0
        ngap_f=max(1,nm*FRAC//100)
        bj=n-(S+1)
        dobias = (0<=bj<T) and not NOBIAS
        tl=[(j,k) for k in range(4) for j in range(T)]
        cv=tl[2*(n-S):2*(n-S)+2] if S<=n<=S+7 else []
        for p,(c,j,k) in enumerate(ms):
            mfma(c,j,k)
            for f in after.get(p,[]): put(f)
            if cv and p==nm//2:
                l=newl("cv")
                e("s_cmp_eq_u32 s28, 0"); e(f"s_cbranch_scc0 {l}")
                for q,(jj,kk) in enumerate(cv):
                    e(f"ds_read_b64 v[{XT+4*q+2}:{XT+4*q+3}], v7 offset:{16*XS*kk+32*jj}")
                e("s_waitcnt lgkmcnt(0)")
                for q,(jj,kk) in enumerate(cv):
                    qd=XT+4*q
                    e(f"v_lshlrev_b32 v{qd}, 16, v{qd+2}")
                    e(f"v_and_b32 v{qd+1}, 0xffff0000, v{qd+2}")
                    e(f"v_lshlrev_b32 v{qd+2}, 16, v{qd+3}")
                    e(f"v_and_b32 v{qd+3}, 0xffff0000, v{qd+3}")
                    e(f"ds_write_b128 v2, v[{qd}:{qd+3}] offset:{1024*(T*kk+jj)}")
                g.lab(l)
            if dobias:
                if p==0:
                    rb=RAW+2*bj
                    g.need([f"v{rb}"])
                    e(f"v_lshlrev_b32 v{TMP}, 16, v{rb}"); e(f"v_and_b32 v{TMP+1}, 0xffff0000, v{rb}")
                    e(f"v_lshlrev_b32 v{TMP+2}, 16, v{rb+1}"); e(f"v_and_b32 v{TMP+3}, 0xffff0000, v{rb+1}")
                for hh in range(2):
                    (_,jj,kk)=ms[(p-5-hh)%nm]
                    if jj==bj:
                        a=acc(jj,kk)
                        for r in (2*hh,2*hh+1): e(f"v_add_f32 v{a+r}, v{TMP+r}, v{a+r}")
            tgt=-(-len(seq)*(p+1)//ngap_f)
            while fi<min(tgt,len(seq)):
                put(seq[fi]); fi+=1
            rem_g=nm-p
            if epi[ei:] and epi[ei][0]<=p:
                take=-(-len(epi[ei:])//rem_g)
                while take>0 and ei<len(epi) and epi[ei][0]<=p:
                    put(epi[ei][1]); ei+=1; take-=1
        while fi<len(seq): put(seq[fi]); fi+=1
        if ei<len(epi): e("s_nop 7")
        while ei<len(epi): put(epi[ei][1]); ei+=1
    def gen_type(T):
        g.vq=list(common_vq); g.drain()
        g.lab(f"L_start{T}")
        for f in ldA(PRELOAD[0],T,0): put(f)
        for f in x0rows("xb",RAW+6): put(f)
        for f in ldA(PRELOAD[1],T,0): put(f)
        for k in range(4):
            for j in range(T):
                for i in range(4): e(f"v_mov_b32 v{acc(j,k)+i}, 1.0")
        v=vwait(T,("p",0),"xa")
        if STAMP==4: e("s_memtime s[66:67]")
        e(f"s_waitcnt vmcnt({v})")
        if STAMP==4: e("s_memtime s[68:69]")
        e("s_barrier")
        if STAMP==4: e("s_memtime s[70:71]")
        for f in [rdB(0,0),rdB(0,1)]: put(f)
        rest=[]
        if T==3:
            rest.append(f"s_cmp_eq_u32 s24, 7\n    s_cbranch_scc0 L_nb0\n    s_mov_b32 m0, {BZ}\n    s_mov_b64 exec, s[36:37]\n    buffer_load_dwordx4 v{RAW+5}, s[20:23], 0 offen lds\n    s_mov_b64 exec, -1\nL_nb0:")
        for c in PRELOAD[2:]: rest+=ldA(c,T,0)
        if PF and not PFS: rest.append(("vm",f"buffer_load_dword v{TMP+7}, v{RAW+4}, s[8:11], s41 offen","pf"))
        for n in range(S):
            gen_step(T,n,0,True,rest if n==0 else ())
        e(f"s_branch L_sS_{T}")
        saveL=len(g.L); lq=list(g.lq)
        g.L.append(".p2align 6")
        g.lab(f"L_layer{T}")
        mark=len(g.L)
        vq_entry=list(g.vq)
        for n in range(S,NST): gen_step(T,n,0,False)
        g.drain()
        for n in range(0,S): gen_step(T,n,1,False)
        for n in range(S,NST): gen_step(T,n,1,False)
        g.drain()
        del g.L[mark:]
        g.drain()
        for n in range(NST):
            if n==S: g.lab(f"L_sS_{T}");
            if n==S: g.drain()
            gen_step(T,n,2,False)
        e("s_add_u32 s28, s28, 1")
        e(f"s_cmp_lt_u32 s28, {L}")
        e("s_waitcnt lgkmcnt(0)"); g.drain()
        e(f"s_cbranch_scc1 L_layer{T}")
        e("s_nop 7")
        pa,pb=epi_plan(T)
        for (mp,f) in epi_seq(T,epi_group(1,T)[pb[12+S]:],lambda rp:0): put(f)
        e("s_branch L_fin")
    gen_type(4); g.drain()
    gen_type(3); g.drain()
    g.lab("L_fin")
    e("s_waitcnt lgkmcnt(0)")
    e("s_barrier")
    e("v_and_b32 v49, 63, v0")
    e("v_lshlrev_b32 v50, 4, v49")
    e("v_xor_b32 v51, 16, v50")
    e(f"s_mul_i32 s38, s24, {8*ROWB}")
    e(f"s_mul_i32 s39, s24, {8*XS}")
    e("v_add_u32 v48, s39, v50")
    e("s_mov_b64 exec, s[36:37]")
    for r in range(8):
        e(f"ds_read_b128 v[{56+4*r}:{56+4*r+3}], v48 offset:{r*XS}")
    for r in range(8):
        e(f"s_waitcnt lgkmcnt({7-r})")
        e(f"buffer_store_dwordx4 v[{56+4*r}:{56+4*r+3}], v{50+((r>>2)&1)}, s[16:19], s38 offen"+(" nt" if NT else ""))
        e(f"s_add_u32 s38, s38, {ROWB}")
    if STAMP:
        e("s_mov_b64 exec, -1")
        e("s_memtime s[96:97]")
        e("s_memrealtime s[100:101]")
        e("s_load_dwordx2 s[44:45], s[0:1], 32")
        e("s_waitcnt lgkmcnt(0)")
        e("s_cmp_lg_u32 s2, 0")
        e("s_cbranch_scc1 L_done")
        e(f"s_cmp_lg_u32 s24, {SW}")
        e("s_cbranch_scc1 L_done")
        e("s_and_b32 s45, s45, 0xffff"); e("s_mov_b32 s46, 256"); e("s_mov_b32 s47, 0x20000")
        e("v_mov_b32 v20, 0")
        for i in range(15):
            e(f"s_sub_u32 s48, s{66+2*i}, s64")
            e("v_mov_b32 v21, s48")
            e(f"buffer_store_dword v21, v20, s[44:47], 0 offen offset:{8+4*i}")
        e("s_sub_u32 s48, s100, s98")
        e("v_mov_b32 v21, s48")
        e("buffer_store_dword v21, v20, s[44:47], 0 offen offset:0")
        e("s_sub_u32 s48, s96, s64")
        e("v_mov_b32 v21, s48")
        e("buffer_store_dword v21, v20, s[44:47], 0 offen offset:4")
    g.lab("L_done")
    return g.L
P=[]; a=P.append
a("s_cmp_ge_u32 s2, 78"); a("s_cbranch_scc1 L_pdone")
a("s_load_dwordx2 s[4:5], s[0:1], 8"); a("s_load_dwordx2 s[6:7], s[0:1], 40")
a("v_lshrrev_b32 v1, 6, v0"); a("v_and_b32 v2, 63, v0"); a("v_readfirstlane_b32 s12, v1")
a("s_mul_i32 s13, s2, 26624")
a("s_waitcnt lgkmcnt(0)")
a("s_add_u32 s8, s4, s13"); a("s_addc_u32 s9, s5, 0"); a("s_and_b32 s9, s9, 0xffff"); a("s_mov_b32 s10, 26624"); a("s_mov_b32 s11, 0x20000")
a("s_add_u32 s16, s6, s13"); a("s_addc_u32 s17, s7, 0"); a("s_and_b32 s17, s17, 0xffff"); a("s_mov_b32 s18, 26624"); a("s_mov_b32 s19, 0x20000")
a("s_movk_i32 s40, 1261")
for i in range(4):
    a(f"s_add_u32 s14, s12, {8*i}")
    a("s_lshl_b32 s15, s14, 6")
    a("v_add_u32 v3, s15, v2")
    a("v_mul_lo_u32 v4, v3, s40"); a("v_lshrrev_b32 v4, 16, v4")
    a("v_mul_u32_u24 v5, 52, v4"); a("v_sub_u32 v5, v3, v5")
    a("v_bfe_u32 v6, v4, 3, 1"); a("v_lshlrev_b32 v6, 1, v6"); a("v_xor_b32 v5, v5, v6")
    a("v_mul_u32_u24 v4, 832, v4"); a("v_lshl_add_u32 v4, v5, 4, v4")
    a("s_lshl_b32 m0, s14, 10")
    if i==3:
        a("s_cmp_lt_u32 s12, 2"); a("s_cbranch_scc0 L_p3")
    else: a("s_nop 0")
    a("buffer_load_dwordx4 v4, s[8:11], 0 offen"+(" nt" if NT else "")+" lds")
    if i==3: a("L_p3:")
a("v_lshrrev_b32 v10, 4, v2"); a("v_bfe_u32 v11, v2, 2, 2"); a("v_and_b32 v12, 3, v2")
a("v_lshl_add_u32 v13, v10, 3, v11"); a("v_mul_u32_u24 v13, 832, v13"); a("v_lshl_add_u32 v13, v12, 3, v13")
a("v_and_b32 v14, 1, v10")
a("v_lshlrev_b32 v15, 4, v2")
a("s_waitcnt vmcnt(0)"); a("s_barrier")
for i in range(4):
    a(f"s_add_u32 s14, s12, {8*i}")
    a("v_xor_b32 v16, s14, v14"); a("v_lshl_add_u32 v16, v16, 5, v13")
    if i==3:
        a("s_cmp_lt_u32 s12, 2"); a("s_cbranch_scc0 L_pdone")
    a(f"ds_read_b64_tr_b16 v[{20+4*i}:{21+4*i}], v16"); a(f"ds_read_b64_tr_b16 v[{22+4*i}:{23+4*i}], v16 offset:3328")
    a("s_lshl_b32 s15, s14, 10")
    a("s_waitcnt lgkmcnt(0)")
    a(f"buffer_store_dwordx4 v[{20+4*i}:{23+4*i}], v15, s[16:19], s15 offen")
a("L_pdone:")
PRE="\n".join(("    "+x if not x.endswith(":") else x) for x in P)
build(False)
body=build(True)
hdr=open("cdna_kernels/"+NAME+".s.ref").read().split("; Override launch")[0]
out=hdr+f"; @launch kernel=dcn_pre_kernel grid=(78,1,1) block=(512,1,1) lds=26624\n; @launch kernel={NAME}_kernel grid=(256,1,1) block=(512,1,1) lds={LDS}\n"
def kd(name,nfv,acc_off): return f""".p2align 6
.amdhsa_kernel {name}
  .amdhsa_next_free_vgpr {nfv}
  .amdhsa_next_free_sgpr 102
  .amdhsa_accum_offset {acc_off}
  .amdhsa_group_segment_fixed_size 0
  .amdhsa_kernarg_size 48
  .amdhsa_user_sgpr_count 2
  .amdhsa_user_sgpr_kernarg_segment_ptr 1
  .amdhsa_system_sgpr_workgroup_id_x 1
.end_amdhsa_kernel
"""
out+=f""".amdgcn_target "amdgcn-amd-amdhsa--gfx950"
.text
.globl dcn_pre_kernel
.p2align 8
.type dcn_pre_kernel,@function
dcn_pre_kernel:
{PRE}
s_endpgm
.globl {NAME}_kernel
.p2align 8
.type {NAME}_kernel,@function
{NAME}_kernel:
"""+"\n".join(body)+f"""
s_endpgm
.section .rodata,"a"
"""+kd("dcn_pre_kernel",64,64)+kd(NAME+"_kernel",NV+NAG,NV)
open(sys.argv[1] if len(sys.argv)>1 else "cdna_kernels/"+NAME+".s","w").write(out)
print("LDS",LDS,"NSET",NSET,ASET,"LD",dict(sorted(LD.items())),"PRE",PRELOAD,"nfv",NV+NAG)
print({k:v for k,v in sorted(WAITS.items(),key=str) if k[0]==4})
```

```python
import sys,os
def env(k,d=0): return int(os.environ.get(k,str(d)))
STAMP=env("STAMP"); NODMA=env("NODMA"); NORD=env("NORD"); NOMFMA=env("NOMFMA"); NOEPI=env("NOEPI"); NOBIAS=env("NOBIAS")
FRAC=env("FRAC",75); PRIO=env("PRIO",0); PF=env("PF",0); SW=env("SW",0); NT=env("NT",1); S=env("S",2); PD=env("PD",3); XPF=env("XPF",3); STG=env("STG",0); PF2=env("PF2",2); PF0=env("PF0",0); ALT=env("ALT",0); PFS=env("PFS",0)
NAME="standalone__cross_network_dcn__recsys"
D=416; L=6; ROWB=832; XS=864
CHG=26624; XALT=65536; BZ=57344; LDS=XALT+64*XS
WB=L*D*D*2
TILEB=64*ROWB
NST=13+S
def ustart(n):
    if n<=S: return n
    if n<=13: return S+2*(n-S)
    return S+2*(13-S)+(n-13)
def step_of_time(t):
    t%=26
    for n in range(NST-1,-1,-1):
        if ustart(n)<=t: return n
TLD={x:2*x-S-2*PD for x in range(13)}
LD={}
for x in range(13):
    t=TLD[x]
    n=step_of_time(t)
    LD.setdefault(n,[]).append(x+13 if t<0 else x)
PRELOAD=[x for x in range(13) if TLD[x]<0]
def alloc():
    iv={}
    for n,l in LD.items():
        for c in l:
            x=c%13
            st=n-NST if c>=13 else n
            iv[x]=(st,x+S)
    for m in range(4,12):
        asg={}
        def ok(x,s):
            for y,t in asg.items():
                if t!=s: continue
                for sh in (-NST,0,NST):
                    a0,a1=iv[x]; b0,b1=iv[y][0]+sh,iv[y][1]+sh
                    if not (a1<b0 or b1<a0): return False
            return True
        def rec(x):
            if x==13: return True
            for s in range(m):
                if ok(x,s):
                    asg[x]=s
                    if rec(x+1): return True
                    del asg[x]
            return False
        if rec(0): return m,[asg[x] for x in range(13)]
NSET,ASET=alloc()
class G:
    def __init__(s): s.L=[]; s.lq=[]; s.vq=[]
    def e(s,t): s.L.append("    "+t)
    def lab(s,t): s.L.append(t+":")
    def lds(s,t,dst=()):
        s.e(t); s.lq.append(set(dst))
    def need(s,regs):
        regs=set(regs); idx=-1
        for i,d in enumerate(s.lq):
            if d&regs: idx=i
        if idx>=0:
            n=len(s.lq)-1-idx
            s.e(f"s_waitcnt lgkmcnt({min(n,15)})")
            s.lq=s.lq[idx+1:]
    def drain(s): s.lq=[]
    def vm(s,t,tag):
        s.e(t); s.vq.append(tag)
    def vcount(s,tag):
        idx=-1
        for i,d in enumerate(s.vq):
            if d==tag: idx=i
        if idx<0: return None
        return len(s.vq)-1-idx
def ar(b,n): return [f"a{b+i}" for i in range(n)]
def vr(b,n): return [f"v{b+i}" for i in range(n)]
TMP=8; RAW=20; XP=28; ACC=60; NV=ACC+64
def xp(j,k): return XP+2*(4*k+j)
def acc(j,k): return ACC+4*(4*k+j)
def SA(c,j): return 16*ASET[c%13]+4*j
def SB(k): return 16*NSET+4*k
NAG=16*NSET+16
WAITS={}
def build(final):
    g=G(); e=g.e
    LBL=[0]
    def newl(p):
        LBL[0]+=1; return f"L_{p}{LBL[0]}"
    e("s_cmp_ge_u32 s2, 256")
    e("s_cbranch_scc1 L_done")
    if STAMP==4: e("s_memtime s[90:91]")
    e("s_load_dwordx2 s[4:5], s[0:1], 0")
    e("s_load_dwordx4 s[32:35], s[0:1], 16")
    e("s_load_dwordx2 s[6:7], s[0:1], 40")
    e("v_lshrrev_b32 v48, 6, v0")
    e("v_and_b32 v49, 63, v0")
    e("v_readfirstlane_b32 s24, v48")
    e("s_mul_i32 s29, s2, %d"%TILEB)
    e("s_mov_b32 s36, -1"); e("s_mov_b32 s37, 0xfffff")
    e("v_lshlrev_b32 v50, 4, v49")
    e("s_and_b32 s40, s24, 1")
    e("s_lshl_b32 s40, s40, 4")
    e("v_xor_b32 v51, s40, v50")
    e(f"s_mul_i32 s38, s24, {4*ROWB}")
    e(f"s_mul_i32 s39, s24, {4*XS}")
    e("s_waitcnt lgkmcnt(0)")
    e("s_add_u32 s12, s4, s29"); e("s_addc_u32 s13, s5, 0"); e("s_and_b32 s13, s13, 0xffff"); e(f"s_mov_b32 s14, {TILEB}"); e("s_mov_b32 s15, 0x20000")
    def x0rows(tag,vreg):
        out=[]
        for r in range(4):
            out.append(("vm",f"s_mov_b32 m0, s39\n    s_mov_b64 exec, s[36:37]\n    buffer_load_dwordx4 v{vreg}, s[12:15], s38 offen"+(" nt" if NT else "")+f" lds\n    s_mov_b64 exec, -1\n    s_add_u32 s39, s39, {XS}\n    s_add_u32 s38, s38, {ROWB}",tag))
        return out
    def put(f):
        if isinstance(f,tuple):
            if f[0]=="dma":
                if not NODMA or f[2][1]<100: g.vm(f[1],f[2])
            elif f[0]=="vm": g.vm(f[1],f[2])
            elif f[0]=="lds":
                if NORD and "ds_read" in f[1]: return
                g.lds(f[1],f[2])
            elif f[0]=="need": g.need(f[1])
        else: e(f)
    for f in x0rows("xa",51): put(f)
    e(f"s_add_u32 s38, s38, {28*ROWB}")
    e(f"s_add_u32 s39, s39, {28*XS}")
    e("s_mov_b32 s8, s6"); e("s_and_b32 s9, s7, 0xffff"); e(f"s_mov_b32 s10, {WB}"); e("s_mov_b32 s11, 0x20000")
    e("s_lshl_b32 s46, s24, 2")
    e("s_mul_i32 s47, s24, 3")
    e("s_add_u32 s47, s47, 2")
    e("s_cmp_lt_u32 s24, 2")
    e("s_cselect_b32 s46, s46, s47")
    e("s_cselect_b32 s45, 0, 1")
    e("s_lshl_b32 s27, s46, 10")
    e("v_add_u32 v1, s27, v50")
    e("s_mov_b32 s25, 0")
    e(f"v_mov_b32 v{RAW+6}, v51")
    e(f"v_mov_b32 v{RAW+5}, v50")
    e("s_add_u32 s16, s34, s29"); e("s_addc_u32 s17, s35, 0"); e("s_and_b32 s17, s17, 0xffff"); e(f"s_mov_b32 s18, {TILEB}"); e("s_mov_b32 s19, 0x20000")
    e("s_mov_b32 s20, s32"); e("s_and_b32 s21, s33, 0xffff"); e(f"s_mov_b32 s22, {L*ROWB}"); e("s_mov_b32 s23, 0x20000")
    e("s_lshl_b32 s29, s46, 5")
    e("v_lshrrev_b32 v52, 4, v49")
    e("v_lshrrev_b32 v55, 1, v52")
    e("v_and_b32 v56, 1, v52")
    e("v_and_b32 v53, 15, v49")
    e("v_bfe_u32 v54, v53, 2, 1")
    e(f"v_mul_u32_u24 v57, {XS}, v53")
    e("v_xor_b32 v58, v52, v54")
    e("v_lshl_add_u32 v3, v58, 4, v57")
    e("v_add_u32 v57, s29, v57")
    e("v_xor_b32 v58, v55, v54")
    e("v_lshl_add_u32 v57, v58, 4, v57")
    e("v_lshl_add_u32 v4, v56, 5, v57")
    e(f"v_mul_u32_u24 v58, {16*XS}, v56")
    e("v_add_u32 v5, v57, v58")
    e("v_add_u32 v5, 64, v5")
    e("v_lshl_add_u32 v7, v56, 3, v57")
    e("v_lshlrev_b32 v52, 3, v52")
    e(f"s_add_u32 s50, s29, {BZ}")
    e("v_add_u32 v6, s50, v52")
    e("s_mov_b32 s28, 0"); e(f"s_mov_b32 s43, {ROWB}"); e("s_mov_b32 s52, 0")
    e("s_lshr_b32 s41, s2, 3"); e("s_and_b32 s41, s41, 31")
    e("s_mul_i32 s57, s41, 10816"); e(f"s_add_u32 s57, s57, {346112-6*8192}")
    e("s_mul_i32 s41, s41, 64896")
    e(f"v_lshlrev_b32 v{RAW+4}, 7, v0")
    if STAMP: e("s_memtime s[64:65]"); e("s_memrealtime s[98:99]")
    if PRIO:
        e("s_cmp_ge_u32 s24, 4"); e("s_cbranch_scc0 L_np"); e("s_setprio 1"); g.lab("L_np")
    e("s_cmp_eq_u32 s45, 1")
    e("s_cbranch_scc1 L_start3")
    common_vq=list(g.vq)
    def ldA(c,T,lay):
        tag=("A",lay*13+c)
        l=[("dma",f"buffer_load_dwordx4 a[{SA(c,j)}:{SA(c,j)+3}], v1, s[8:11], s25 offen offset:{1024*j}",tag) for j in range(T)]
        l.append(f"s_add_u32 s25, s25, {CHG}")
        return l
    def rdB(c,k):
        d=SB(k)
        return ("lds",f"ds_read_b128 a[{d}:{d+3}], v3 offset:{16*XS*k+64*(c%13)}",ar(d,4))
    def mfma(c,j,k):
        a=acc(j,k); A=SA(c,j); B=SB(k)
        g.need(ar(B,4))
        if not NOMFMA: e(f"v_mfma_f32_16x16x32_bf16 v[{a}:{a+3}], a[{A}:{A+3}], a[{B}:{B+3}], v[{a}:{a+3}]")
    def epi_pair(T,t1,t2,vb,off):
        if NOEPI==1: return [],[]
        out=[]
        for n,(j,k) in enumerate((t1,t2)):
            a=acc(j,k); x=xp(j,k); t=TMP+4+4*n
            out+=[f"v_lshlrev_b32 v{t}, 16, v{x}", f"v_and_b32 v{t+1}, 0xffff0000, v{x}",
                  f"v_lshlrev_b32 v{t+2}, 16, v{x+1}", f"v_and_b32 v{t+3}, 0xffff0000, v{x+1}"]
        for n,(j,k) in enumerate((t1,t2)):
            a=acc(j,k); t=TMP+4+4*n
            out+=[f"v_mul_f32 v{t+i}, v{a+i}, v{t+i}" for i in range(4)]
        for n in range(2):
            t=TMP+4+4*n
            out+=[f"v_cvt_pk_bf16_f32 v{TMP+2*n}, v{t}, v{t+1}", f"v_cvt_pk_bf16_f32 v{TMP+2*n+1}, v{t+2}, v{t+3}"]
        out+=[f"s_nop 1\n    v_permlane16_swap_b32 v{TMP}, v{TMP+2}", f"v_permlane16_swap_b32 v{TMP+1}, v{TMP+3}",
              ("lds",f"ds_write_b128 v{vb}, v[{TMP}:{TMP+3}] offset:{off}",[])]
        return [],out
    def epi_group(grp,T):
        k0=2*grp; res=[]
        for k in (k0,k0+1):
            for j in ((0,2) if T==4 else (0,)):
                res.append((T*(k-k0)+j+1,(j,k),(j+1,k),4,16*XS*k+32*j))
        if T==3:
            res.append((5,(2,k0),(2,k0+1),5,16*XS*k0))
        return res
    def epi_seq(T,items,minpos_fn):
        parts=[epi_pair(T,t1,t2,vb,off) for (rp,t1,t2,vb,off) in items]
        seq=[]
        la=XPF-1
        for i in range(min(la,len(parts))):
            for f in parts[i][0]: seq.append((0,f))
        for i,(pf,out) in enumerate(parts):
            mp=minpos_fn(items[i][0])
            nxt=parts[i+la][0] if i+la<len(parts) else []
            for q,f in enumerate(out):
                seq.append((mp,f))
                if q==0:
                    for f2 in nxt: seq.append((mp,f2))
        return seq
    BAR=(12+S,S-1)
    def epi_plan(T):
        n=len(epi_group(0,T))
        a_steps=list(range(12,12+S)); b_steps=[12+S]+list(range(0,S-1))
        def split(n,k,firstsmall):
            base=[n//k]*k
            for i in range(n%k): base[k-1-i]+=1
            return base
        if STG and S==3:
            if T==4: pl=[2,2,0]
            else: pl=[0,1,2]
            return dict(zip(a_steps,pl)), dict(zip(b_steps,pl))
        if STG and S==2:
            if T==4: pl=[3,1]
            else: pl=[0,3]
            return dict(zip(a_steps,pl)), dict(zip(b_steps,pl))
        return dict(zip(a_steps,split(n,S,0))), dict(zip(b_steps,split(n,S,1)))
    def vwait(T,site,tag,extra=""):
        n=g.vcount(tag)
        key=(T,site)
        if n is not None:
            WAITS[key]=min(WAITS.get(key,63),n)
        v=WAITS.get(key)
        return v
    def gen_step(T,n,lay,first,extra_seq=()):
        TA=[(j,k) for k in (0,1) for j in range(T)]; TB=[(j,k) for k in (2,3) for j in range(T)]
        EA=epi_group(0,T); EB=epi_group(1,T)
        pa,pb=epi_plan(T)
        e(f"; ---- T{T} step {n}")
        w=[]
        site=("f" if first else "l",n)
        tags=[]
        if n<=12: tags.append(("A",lay*13+n))
        if first and n==S-1: tags.append("xb")
        vs=[vwait(T,site+(i,),t) for i,t in enumerate(tags)]
        vs=[v for v in vs if v is not None]
        if vs: w.append(f"vmcnt({min(vs)})")
        if n in BAR: w.append("lgkmcnt(0)"); g.drain()
        if w: e("s_waitcnt "+" ".join(w))
        if n in BAR: e("s_barrier")
        if STAMP==1: e(f"s_memtime s[{66+2*n}:{67+2*n}]")
        if STAMP==4 and first: e(f"s_memtime s[{72+2*n}:{73+2*n}]")
        if STAMP==4 and not first and S<=n<=S+5:
            l=newl("st"); e("s_cmp_eq_u32 s28, 0"); e(f"s_cbranch_scc0 {l}"); e(f"s_memtime s[{72+2*n}:{73+2*n}]"); g.lab(l)
        if STAMP==3 and n==S:
            for q in range(6,0,-1): e(f"s_mov_b64 s[{66+2*q}:{67+2*q}], s[{64+2*q}:{65+2*q}]")
            e("s_memtime s[66:67]")
        if ALT==1: e(f"s_setprio {(n+(0 if T==4 else 1))&1}")
        if ALT==2: e(f"s_setprio {0 if T==4 else 1}")
        ms=[]
        if n<=12: ms+=[(n,j,k) for (j,k) in TA]
        if n>=S: ms+=[(n-S,j,k) for (j,k) in TB]
        nm=len(ms)
        after={}
        for p,(c,j,k) in enumerate(ms):
            if j==T-1:
                if k<2 and n<=11: after[p]=[rdB(n+1,k)]
                if k>=2 and n-S<=11: after[p]=[rdB(n-S+1,k)]
        seq=[]
        if n==12+S:
            e(f"v_xor_b32 v3, {XALT}, v3")
            seq+=[rdB(0,0),rdB(0,1)]
        if n==S+1: seq+=[f"v_xor_b32 v4, {XALT}, v4",f"v_xor_b32 v5, {XALT}, v5"]
        if n==S-1: seq+=[rdB(0,2),rdB(0,3)]
        seq+=list(extra_seq)
        for c in LD.get(n,[]): seq+=ldA(c%13,T,lay+(1 if c>=13 else 0))
        if n==S and not NOBIAS:
            for j in range(T): seq.append(("lds",f"ds_read_b64 v[{RAW+2*j}:{RAW+2*j+1}], v6 offset:{32*j}",[f"v{RAW+2*j}"]))
        if PF and PFS and n==PFS and not first:
            l=newl("pf")
            seq.append(f"s_cmp_eq_u32 s28, 0\n    s_cbranch_scc0 {l}\n    v_lshlrev_b32 v{TMP}, 7, v0\n    buffer_load_dword v2, v{TMP}, s[8:11], s41 offen\n{l}:")
        if PF2 and n==PF2 and T==3 and not first:
            l=newl("pf")
            seq.append(f"s_cmp_ge_u32 s24, 6\n    s_cbranch_scc0 {l}\n    v_lshlrev_b32 v{TMP}, 7, v0\n    buffer_load_dword v2, v{TMP}, s[8:11], s57 offen\n    s_add_u32 s57, s57, 346112\n{l}:")
        if n==10:
            l=newl("nb")
            seq=seq+["v_xor_b32 v6, 0x400, v6","s_xor_b32 s52, s52, 0x400", f"s_add_u32 m0, s52, {BZ}"]
            if T==3:
                seq.append(f"s_cmp_eq_u32 s24, 7\n    s_cbranch_scc0 {l}\n    v_lshlrev_b32 v{TMP}, 4, v0\n    v_and_b32 v{TMP}, 0x3ff, v{TMP}\n    s_mov_b64 exec, s[36:37]\n    buffer_load_dwordx4 v{TMP}, s[20:23], s43 offen lds\n    s_mov_b64 exec, -1\n{l}:")
            seq.append(f"s_add_u32 s43, s43, {ROWB}")
        epi=[]
        if n in pa:
            st=sum(pa[m] for m in pa if m<n)
            epi=epi_seq(T,EA[st:st+pa[n]],(lambda rp:max(2*T,rp+4)) if n==12 else (lambda rp:1))
        if n in pb and not first:
            order=[12+S]+list(range(0,S-1))
            st=sum(pb[m] for m in order[:order.index(n)])
            epi=epi_seq(T,EB[st:st+pb[n]],(lambda rp:rp+4) if n==12+S else (lambda rp:2))
        fi=0; ei=0
        ngap_f=max(1,nm*FRAC//100)
        bj=n-(S+1)
        dobias = (0<=bj<T) and not NOBIAS
        tl=[(j,k) for k in range(4) for j in range(T)]
        cv=tl[4*(n-S):4*(n-S)+4] if S<=n<=S+3 else []
        for p,(c,j,k) in enumerate(ms):
            mfma(c,j,k)
            for f in after.get(p,[]): put(f)
            if cv and p==nm//2:
                l=newl("cv")
                e("s_cmp_eq_u32 s28, 0"); e(f"s_cbranch_scc0 {l}")
                for q,(jj,kk) in enumerate(cv):
                    e(f"ds_read_b64 v[{xp(jj,kk)}:{xp(jj,kk)+1}], v7 offset:{16*XS*kk+32*jj}")
                g.lab(l)
            if dobias:
                if p==0:
                    rb=RAW+2*bj
                    g.need([f"v{rb}"])
                    e(f"v_lshlrev_b32 v{TMP}, 16, v{rb}"); e(f"v_and_b32 v{TMP+1}, 0xffff0000, v{rb}")
                    e(f"v_lshlrev_b32 v{TMP+2}, 16, v{rb+1}"); e(f"v_and_b32 v{TMP+3}, 0xffff0000, v{rb+1}")
                for hh in range(2):
                    (_,jj,kk)=ms[(p-5-hh)%nm]
                    if jj==bj:
                        a=acc(jj,kk)
                        for r in (2*hh,2*hh+1): e(f"v_add_f32 v{a+r}, v{TMP+r}, v{a+r}")
            tgt=-(-len(seq)*(p+1)//ngap_f)
            while fi<min(tgt,len(seq)):
                put(seq[fi]); fi+=1
            rem_g=nm-p
            if epi[ei:] and epi[ei][0]<=p:
                take=-(-len(epi[ei:])//rem_g)
                while take>0 and ei<len(epi) and epi[ei][0]<=p:
                    put(epi[ei][1]); ei+=1; take-=1
        while fi<len(seq): put(seq[fi]); fi+=1
        if ei<len(epi): e("s_nop 7")
        while ei<len(epi): put(epi[ei][1]); ei+=1
    def gen_type(T):
        g.vq=list(common_vq); g.drain()
        g.lab(f"L_start{T}")
        for f in ldA(PRELOAD[0],T,0): put(f)
        for f in x0rows("xb",RAW+6): put(f)
        for f in ldA(PRELOAD[1],T,0): put(f)
        for k in range(4):
            for j in range(T):
                for i in range(4): e(f"v_mov_b32 v{acc(j,k)+i}, 1.0")
        v=vwait(T,("p",0),"xa")
        if STAMP==4: e("s_memtime s[66:67]")
        e(f"s_waitcnt vmcnt({v})")
        if STAMP==4: e("s_memtime s[68:69]")
        e("s_barrier")
        if STAMP==4: e("s_memtime s[70:71]")
        for f in [rdB(0,0),rdB(0,1)]: put(f)
        rest=[]
        if T==3:
            rest.append(f"s_cmp_eq_u32 s24, 7\n    s_cbranch_scc0 L_nb0\n    s_mov_b32 m0, {BZ}\n    s_mov_b64 exec, s[36:37]\n    buffer_load_dwordx4 v{RAW+5}, s[20:23], 0 offen lds\n    s_mov_b64 exec, -1\nL_nb0:")
        if PF0 and T==3:
            rest.append(f"s_cmp_ge_u32 s24, 6\n    s_cbranch_scc0 L_pf0\n    s_sub_u32 s59, s57, 346112\n    v_lshlrev_b32 v{TMP}, 7, v0\n    buffer_load_dword v2, v{TMP}, s[8:11], s59 offen\nL_pf0:")
        for c in PRELOAD[2:]: rest+=ldA(c,T,0)
        if PF and not PFS: rest.append(("vm",f"buffer_load_dword v2, v{RAW+4}, s[8:11], s41 offen","pf"))
        for n in range(S):
            gen_step(T,n,0,True,rest if n==0 else ())
        e(f"s_branch L_sS_{T}")
        saveL=len(g.L); lq=list(g.lq)
        g.L.append(".p2align 6")
        g.lab(f"L_layer{T}")
        mark=len(g.L)
        vq_entry=list(g.vq)
        for n in range(S,NST): gen_step(T,n,0,False)
        g.drain()
        for n in range(0,S): gen_step(T,n,1,False)
        for n in range(S,NST): gen_step(T,n,1,False)
        g.drain()
        del g.L[mark:]
        g.drain()
        for n in range(NST):
            if n==S: g.lab(f"L_sS_{T}");
            if n==S: g.drain()
            gen_step(T,n,2,False)
        e("s_add_u32 s28, s28, 1")
        e(f"s_cmp_lt_u32 s28, {L}")
        e("s_waitcnt lgkmcnt(0)"); g.drain()
        e(f"s_cbranch_scc1 L_layer{T}")
        e("s_nop 7")
        pa,pb=epi_plan(T)
        for (mp,f) in epi_seq(T,epi_group(1,T)[pb[12+S]:],lambda rp:0): put(f)
        e("s_branch L_fin")
    gen_type(4); g.drain()
    gen_type(3); g.drain()
    g.lab("L_fin")
    e("s_waitcnt lgkmcnt(0)")
    e("s_barrier")
    e("v_and_b32 v49, 63, v0")
    e("v_lshlrev_b32 v50, 4, v49")
    e("v_xor_b32 v51, 16, v50")
    e(f"s_mul_i32 s38, s24, {8*ROWB}")
    e(f"s_mul_i32 s39, s24, {8*XS}")
    e("v_add_u32 v48, s39, v50")
    e("s_mov_b64 exec, s[36:37]")
    for r in range(8):
        e(f"ds_read_b128 v[{56+4*r}:{56+4*r+3}], v48 offset:{r*XS}")
    for r in range(8):
        e(f"s_waitcnt lgkmcnt({7-r})")
        e(f"buffer_store_dwordx4 v[{56+4*r}:{56+4*r+3}], v{50+((r>>2)&1)}, s[16:19], s38 offen"+(" nt" if NT else ""))
        e(f"s_add_u32 s38, s38, {ROWB}")
    if STAMP:
        e("s_mov_b64 exec, -1")
        e("s_memtime s[96:97]")
        e("s_memrealtime s[100:101]")
        e("s_load_dwordx2 s[44:45], s[0:1], 32")
        e("s_waitcnt lgkmcnt(0)")
        e("s_cmp_lg_u32 s2, 0")
        e("s_cbranch_scc1 L_done")
        e(f"s_cmp_lg_u32 s24, {SW}")
        e("s_cbranch_scc1 L_done")
        e("s_and_b32 s45, s45, 0xffff"); e("s_mov_b32 s46, 256"); e("s_mov_b32 s47, 0x20000")
        e("v_mov_b32 v20, 0")
        for i in range(15):
            e(f"s_sub_u32 s48, s{66+2*i}, s64")
            e("v_mov_b32 v21, s48")
            e(f"buffer_store_dword v21, v20, s[44:47], 0 offen offset:{8+4*i}")
        e("s_sub_u32 s48, s100, s98")
        e("v_mov_b32 v21, s48")
        e("buffer_store_dword v21, v20, s[44:47], 0 offen offset:0")
        e("s_sub_u32 s48, s96, s64")
        e("v_mov_b32 v21, s48")
        e("buffer_store_dword v21, v20, s[44:47], 0 offen offset:4")
    g.lab("L_done")
    return g.L
P=[]; a=P.append
a("s_cmp_ge_u32 s2, 78"); a("s_cbranch_scc1 L_pdone")
a("s_load_dwordx2 s[4:5], s[0:1], 8"); a("s_load_dwordx2 s[6:7], s[0:1], 40")
a("v_lshrrev_b32 v1, 6, v0"); a("v_and_b32 v2, 63, v0"); a("v_readfirstlane_b32 s12, v1")
a("s_mul_i32 s13, s2, 26624")
a("s_waitcnt lgkmcnt(0)")
a("s_add_u32 s8, s4, s13"); a("s_addc_u32 s9, s5, 0"); a("s_and_b32 s9, s9, 0xffff"); a("s_mov_b32 s10, 26624"); a("s_mov_b32 s11, 0x20000")
a("s_add_u32 s16, s6, s13"); a("s_addc_u32 s17, s7, 0"); a("s_and_b32 s17, s17, 0xffff"); a("s_mov_b32 s18, 26624"); a("s_mov_b32 s19, 0x20000")
a("s_movk_i32 s40, 1261")
for i in range(4):
    a(f"s_add_u32 s14, s12, {8*i}")
    a("s_lshl_b32 s15, s14, 6")
    a("v_add_u32 v3, s15, v2")
    a("v_mul_lo_u32 v4, v3, s40"); a("v_lshrrev_b32 v4, 16, v4")
    a("v_mul_u32_u24 v5, 52, v4"); a("v_sub_u32 v5, v3, v5")
    a("v_bfe_u32 v6, v4, 3, 1"); a("v_lshlrev_b32 v6, 1, v6"); a("v_xor_b32 v5, v5, v6")
    a("v_mul_u32_u24 v4, 832, v4"); a("v_lshl_add_u32 v4, v5, 4, v4")
    a("s_lshl_b32 m0, s14, 10")
    if i==3:
        a("s_cmp_lt_u32 s12, 2"); a("s_cbranch_scc0 L_p3")
    else: a("s_nop 0")
    a("buffer_load_dwordx4 v4, s[8:11], 0 offen"+(" nt" if NT else "")+" lds")
    if i==3: a("L_p3:")
a("v_lshrrev_b32 v10, 4, v2"); a("v_bfe_u32 v11, v2, 2, 2"); a("v_and_b32 v12, 3, v2")
a("v_lshl_add_u32 v13, v10, 3, v11"); a("v_mul_u32_u24 v13, 832, v13"); a("v_lshl_add_u32 v13, v12, 3, v13")
a("v_and_b32 v14, 1, v10")
a("v_lshlrev_b32 v15, 4, v2")
a("s_waitcnt vmcnt(0)"); a("s_barrier")
for i in range(4):
    a(f"s_add_u32 s14, s12, {8*i}")
    a("v_xor_b32 v16, s14, v14"); a("v_lshl_add_u32 v16, v16, 5, v13")
    if i==3:
        a("s_cmp_lt_u32 s12, 2"); a("s_cbranch_scc0 L_pdone")
    a(f"ds_read_b64_tr_b16 v[{20+4*i}:{21+4*i}], v16"); a(f"ds_read_b64_tr_b16 v[{22+4*i}:{23+4*i}], v16 offset:3328")
    a("s_lshl_b32 s15, s14, 10")
    a("s_waitcnt lgkmcnt(0)")
    a(f"buffer_store_dwordx4 v[{20+4*i}:{23+4*i}], v15, s[16:19], s15 offen")
a("L_pdone:")
PRE="\n".join(("    "+x if not x.endswith(":") else x) for x in P)
build(False)
body=build(True)
hdr=open("cdna_kernels/"+NAME+".s.ref").read().split("; Override launch")[0]
out=hdr+f"; @launch kernel=dcn_pre_kernel grid=(78,1,1) block=(512,1,1) lds=26624\n; @launch kernel={NAME}_kernel grid=(256,1,1) block=(512,1,1) lds={LDS}\n"
def kd(name,nfv,acc_off): return f""".p2align 6
.amdhsa_kernel {name}
  .amdhsa_next_free_vgpr {nfv}
  .amdhsa_next_free_sgpr 102
  .amdhsa_accum_offset {acc_off}
  .amdhsa_group_segment_fixed_size 0
  .amdhsa_kernarg_size 48
  .amdhsa_user_sgpr_count 2
  .amdhsa_user_sgpr_kernarg_segment_ptr 1
  .amdhsa_system_sgpr_workgroup_id_x 1
.end_amdhsa_kernel
"""
out+=f""".amdgcn_target "amdgcn-amd-amdhsa--gfx950"
.text
.globl dcn_pre_kernel
.p2align 8
.type dcn_pre_kernel,@function
dcn_pre_kernel:
{PRE}
s_endpgm
.globl {NAME}_kernel
.p2align 8
.type {NAME}_kernel,@function
{NAME}_kernel:
"""+"\n".join(body)+f"""
s_endpgm
.section .rodata,"a"
"""+kd("dcn_pre_kernel",64,64)+kd(NAME+"_kernel",NV+NAG,NV)
open(sys.argv[1] if len(sys.argv)>1 else "cdna_kernels/"+NAME+".s","w").write(out)
print("LDS",LDS,"NSET",NSET,ASET,"LD",dict(sorted(LD.items())),"PRE",PRELOAD,"nfv",NV+NAG)
print({k:v for k,v in sorted(WAITS.items(),key=str) if k[0]==4})
```
